```python
import torch

def _softmax(x, axis=-1):
    return torch.softmax(x, dim=axis)

def _gelu(x):
    return torch.nn.functional.gelu(x, approximate='tanh')

def _silu(x):
    return torch.nn.functional.silu(x)

def _sigmoid(x):
    return torch.sigmoid(x)

def _layernorm(x, axis=-1, eps=1e-05):
    m = x.mean(dim=axis, keepdim=True)
    v = x.var(dim=axis, keepdim=True, unbiased=False)
    return (x - m) / torch.sqrt(v + eps)

def _scatter_add(tgt, idx, src, axis=0):
    return tgt.clone().index_add_(axis, idx, src)

def _segment_sum(src, seg, n):
    out = torch.zeros((n,) + src.shape[1:], dtype=src.dtype)
    return out.index_add_(0, seg, src)

def _pad(x, pw):
    flat = tuple((v for pair in reversed(pw) for v in pair))
    return torch.nn.functional.pad(x, flat)
kernel_name = 'standalone__autoregressive_conv_wavernn__speech'

def setup_inputs():

    _w = lambda a: (lambda t: t.to(torch.bfloat16) if t.is_floating_point() else t)(torch.as_tensor(a))
    B, T, D, K = (2, 16000, 256, 5)
    return {'x': _w((lambda *s: torch.randn(*s, dtype=torch.bfloat16) * 0.1)(B, T, D)), 'w': _w((lambda *s: torch.randn(*s, dtype=torch.bfloat16) * 0.1)(K, D, 2 * D))}

def reference(x, w):
    B, T, D = x.shape
    K = w.shape[0]
    dil = 2
    pad = (K - 1) * dil
    xp = _pad(x, ((0, 0), (pad, 0), (0, 0)))
    h = torch.einsum('btd,de->bte', xp[:, 0:T, :], w[0])
    for i in range(1, K):
        h = h + torch.einsum('btd,de->bte', xp[:, i * dil:i * dil + T, :], w[i])
    f, g = (h[..., :D].clone(), h[..., D:].clone())
    return torch.tanh(f) * _sigmoid(g)
```

```python
from fw import *
KN="standalone__autoregressive_conv_wavernn__speech_kernel"
HEADER="""; Kernarg layout for this problem (40 bytes, ptrs only, base s[0:1]):
"""
def wrap(body, comment, lds=163840, sgpr=96, tailpad=0):
    return (HEADER+comment+f"; @launch grid=(256,1,1) block=(256,1,1) lds={lds}\n"
      '.amdgcn_target "amdgcn-amd-amdhsa--gfx950"\n.text\n'
      f".globl {KN}\n.p2align 8\n.type {KN},@function\n{KN}:\n"+body+"\nL_exit:\n    s_endpgm\n"
      +(f".fill {tailpad}, 4, 0xbf800000\n" if tailpad else "")+
      'L_code_end:\n.section .rodata,"a"\n.p2align 6\n'
      f".amdhsa_kernel {KN}\n  .amdhsa_next_free_vgpr 512\n  .amdhsa_next_free_sgpr {sgpr}\n  .amdhsa_accum_offset 256\n"
      "  .amdhsa_group_segment_fixed_size 0\n  .amdhsa_kernarg_size 40\n  .amdhsa_user_sgpr_count 2\n"
      "  .amdhsa_user_sgpr_kernarg_segment_ptr 1\n  .amdhsa_system_sgpr_workgroup_id_x 1\n.end_amdhsa_kernel\n")
```

```python
import re

def R(kind, lo, n=1):
    return [f"{kind}{lo+i}" for i in range(n)]
def rs(kind, lo, n):
    return f"{kind}{lo}" if n == 1 else f"{kind}[{lo}:{lo+n-1}]"

class I:
    __slots__ = ("text","kind","cost","rd","wr","needs","after","before","srcc","t","idx","note","m0","soft")
    def __init__(self, text, kind, rd=(), wr=(), needs=(), after=-1, before=None, srcc=(), cost=None, note=None):
        self.text=text; self.kind=kind; self.rd=set(rd); self.wr=set(wr); self.needs=list(needs)
        self.after=after; self.before=before; self.srcc=set(srcc); self.note=note
        self.cost = cost if cost is not None else (8 if kind in ("trans","mfma","perm") else 4)
        self.t=None; self.idx=None
    def __repr__(self): return self.text

VALU=("valu","trans","perm","dpp")
LGKM=("dsr","dsw")
VM=("dma","vld","vst")

class Sched:
    def __init__(self, lds_done=200, verbose=False):
        self.out=[]; self.lg=[]; self.vm=[]; self.t=0
        self.pend={}
        self.lds_done=lds_done
        self.overlog=[]; self.off=0; self.pre=0; self.post=0; self.vm_lat=400; self.vm_done=None; self.st_done=4000; self.hooks={}; self.nwait=0; self.nnop=0; self.over=0
        self.mf_free=0
    def hazard(self, ins):
        need=0; states=0
        for p in reversed(self.out[-24:]):
            req=0
            if p.kind=="mfma":
                if ins.kind=="mfma":
                    if p.wr & (ins.rd - ins.srcc): req=8
                    elif p.wr & ins.srcc and p.wr != ins.srcc: req=6
                elif ins.kind in VALU:
                    if p.wr & (ins.rd|ins.wr): req=8
                    elif p.srcc & ins.wr: req=3
                elif ins.kind in LGKM or ins.kind in VM:
                    if p.wr & (ins.rd|ins.wr): req=8
            elif p.kind in VALU:
                if ins.kind=="mfma" and p.wr & ins.rd: req=2
                elif ins.kind in ("perm","dpp") and p.wr & (ins.rd): req=2
                elif p.kind=="trans" and ins.kind in VALU and p.wr & ins.rd: req=1
                if ins.kind in VM and any(r[0]=="s" for r in p.wr & ins.rd): req=max(req,5)
                if ins.kind in VALU and any(r[0]=="s" or r=="vcc" for r in p.wr & ins.rd): req=max(req,2)
            elif p.kind=="vst":
                if p.rd & ins.wr: req=2
            elif p.kind=="dsw":
                if p.rd & ins.wr: req=1
            elif p.kind=="salu":
                if "m0" in p.wr and ins.kind=="dma": req=1
            need=max(need, req-states)
            if p.kind=="nop": states+=p.cost//4
            else: states+=1
        return need
    def waits(self, ins):
        deps=set(ins.needs)
        for r in ins.rd|ins.wr:
            if r in self.pend: deps.add(self.pend[r])
        lg=vm=None
        for d in deps:
            if d in self.lg:
                n=len(self.lg)-1-self.lg.index(d); lg=n if lg is None else min(lg,n)
            elif d in self.vm:
                n=len(self.vm)-1-self.vm.index(d); vm=n if vm is None else min(vm,n)
            else:
                assert d.idx is not None, f"{ins} needs un-emitted {d}"
        return lg,vm
    def _retire(self, q, n):
        done=q[:len(q)-n] if n<len(q) else []
        del q[:len(done)]
        for d in done:
            for r in d.wr:
                if self.pend.get(r) is d: del self.pend[r]
    def raw(self, ins):
        ins.idx=len(self.out); self.off+=isize(ins.text)
        if ins.kind=="mfma":
            self.t=max(self.t, self.mf_free); self.mf_free=self.t+16
        ins.t=self.t; self.t+=ins.cost
        self.out.append(ins)
        if ins.kind in LGKM: self.lg.append(ins)
        elif ins.kind in VM: self.vm.append(ins)
        if ins.kind in ("dsr","vld"):
            for r in ins.wr: self.pend[r]=ins
    def emit(self, ins):
        lg,vm=self.waits(ins)
        if lg is not None or vm is not None:
            s="s_waitcnt"
            if vm is not None:
                if self.vm_done:
                    k=0
                    for d in self.vm:
                        if self.t-d.t<(self.st_done if d.kind=="vst" else self.vm_done): break
                        k+=1
                    vm=min(vm,len(self.vm)-k)
                vm=min(vm,63); s+=f" vmcnt({vm})"; self._retire(self.vm,vm)
            young=sum(1 for d in self.lg if self.t-d.t<self.lds_done)
            if lg is None and young<len(self.lg): lg=young
            if lg is not None:
                lg=min(lg,young,15); extra=2*sum(1 for d in self.out[-40:] if d.kind=="stamp" and self.t-d.t<260)
                s+=f" lgkmcnt({min(15,lg+extra)})"; self._retire(self.lg,lg)
            self.raw(I(s,"wait")); self.nwait+=1
        h=self.hazard(ins)
        if h>0:
            self.raw(I(f"s_nop {h-1}","nop",cost=4*h)); self.nnop+=h
        self.raw(ins)
    def cost_of(self, ins):
        lg,vm=self.waits(ins)
        return ins.cost+(4 if (lg is not None or vm is not None) else 0)
    def young_dep(self, ins, lat=150):
        deps=set(ins.needs)
        for r in ins.rd|ins.wr:
            if r in self.pend: deps.add(self.pend[r])
        return any((d in self.lg and self.t-d.t<lat) or (d in self.vm and self.t-d.t<self.vm_lat) for d in deps)
    def ready_needs(self, ins):
        return all(d.idx is not None for d in ins.needs)
    def run(self, backbone, streams, budget=8, soft=None):
        pos=[0]*len(streams)
        for s in streams:
            for x in s:
                if x.before is None: x.before=10**9
        ch=True
        while ch:
            ch=False
            for s in streams:
                d=10**9
                for x in reversed(s):
                    if x.before>d: x.before=d; ch=True
                    d=x.before
                    for y in x.needs:
                        if y.idx is None and y.before is not None and y.before>x.before: y.before=x.before; ch=True
        for s in streams:
            for x in s:
                assert x.after<x.before, f"infeasible {x} after={x.after} before={x.before}"
        N=len(backbone)
        for n in range(N+1):
            mf=backbone[n] if n<N else None
            if n in self.hooks: self.hooks[n](self)
            b=budget if n>0 else 0
            o=self.off%4096
            if mf is not None and (4096-o<=self.pre or o<self.post): b=0
            if mf is not None:
                lg,vm=self.waits_safe(mf)
                if lg is not None or vm is not None: b-=4
            while True:
                cand=[]
                for k,s in enumerate(streams):
                    if pos[k]<len(s):
                        x=s[pos[k]]
                        if (x.after<n or mf is None) and self.ready_needs(x): cand.append((x.before,k,x))
                cand.sort(key=lambda c:(c[0]>n, min(c[0], c[2].after+soft[c[1]]) if soft and soft[c[1]] is not None else c[0], c[1]))
                pick=None
                for bf,k,x in cand:
                    forced = bf<=n or mf is None
                    if forced: pick=(k,x); break
                    if mf is not None and 4096-self.off%4096>self.pre>=4096-(self.off+8)%4096 and False: continue
                    if self.cost_of(x)<=b and self.hazard(x)==0 and not self.young_dep(x): pick=(k,x); break
                if pick is None: break
                if mf is None:
                    for bf,k,x in cand:
                        if self.hazard(x)==0: pick=(k,x); break
                k,x=pick
                c=self.cost_of(x); b-=c
                self.emit(x); pos[k]+=1
            if b<0 and mf is not None and n>0 and not (4096-o<=self.pre or o<self.post):
                self.over+=-b; self.overlog.append((n,-b))
            if mf is not None: self.emit(mf)
        for k,s in enumerate(streams):
            assert pos[k]==len(s), f"stream {k} stuck at {s[pos[k]]} after={s[pos[k]].after}"
    def waits_safe(self, ins):
        if not self.ready_needs(ins): return 0,None
        return self.waits(ins)
    def text(self):
        return "\n".join("    "+x.text+(f"    ; {x.note}" if x.note else "") for x in self.out)

_REG=re.compile(r"\b([vas])(\d+)\b|\b([vas])\[(\d+):(\d+)\]|\b(m0|vcc|exec)\b")
def regs_in(s):
    o=[]
    for m in _REG.finditer(s):
        if m.group(1): o.append(m.group(1)+m.group(2))
        elif m.group(3): o+= [m.group(3)+str(k) for k in range(int(m.group(4)),int(m.group(5))+1)]
        else: o.append(m.group(6))
    return o
TRANS=("v_exp_f32","v_rcp_f32","v_log_f32","v_rsq_f32","v_sqrt_f32")
def A(text, **kw):
    op,_,rest=text.partition(" ")
    ops=[o.strip() for o in rest.split(",")]
    first=regs_in(ops[0]) if ops and ops[0] else []
    others=regs_in(",".join(ops[1:]))
    if op.startswith("v_mfma"):
        c=regs_in(ops[3]); return I(text,"mfma",rd=others,wr=first,srcc=c,**kw)
    if op.startswith("ds_read"): return I(text,"dsr",rd=others,wr=first,**kw)
    if op.startswith("ds_write"): return I(text,"dsw",rd=first+others,**kw)
    if op.startswith("buffer_load") or op.startswith("global_load"):
        if text.rstrip().endswith(" lds") or " lds " in text: return I(text,"dma",rd=first+others+["m0"],**kw)
        return I(text,"vld",rd=others,wr=first,**kw)
    if op.startswith("buffer_store") or op.startswith("global_store") or op.startswith("buffer_atomic") or op.startswith("global_atomic"):
        return I(text,"vst",rd=first+others,**kw)
    if op=="s_barrier": return I(text,"bar",**kw)
    if op=="s_nop": return I(text,"nop",cost=4*(int(rest)+1))
    if op.startswith("s_cmp") or op.startswith("s_cbranch") or op.startswith("s_branch") or op.startswith("s_setprio") or op.startswith("s_waitcnt") or op.endswith(":"):
        return I(text,"salu",rd=first+others,**kw)
    if op.startswith("s_"): return I(text,"salu",rd=others,wr=first,**kw)
    if op.startswith("v_permlane"): return I(text,"perm",rd=first+others,wr=first+others,**kw)
    if "_dpp" in op: return I(text,"dpp",rd=others+first,wr=first,**kw)
    if op in TRANS: return I(text,"trans",rd=others,wr=first,**kw)
    if op.startswith("v_fmac"): return I(text,"valu",rd=others+first,wr=first,**kw)
    if op.startswith("v_"): return I(text,"valu",rd=others,wr=first,**kw)
    raise ValueError(text)

_INL=re.compile(r"^-?(\d+(\.\d+)?|0x[0-9a-fA-F]+)$")
def _is_lit(o):
    o=o.strip()
    if _INL.match(o):
        if "." in o: return float(o) not in (0.5,-0.5,1.0,-1.0,2.0,-2.0,4.0,-4.0)
        v=int(o,0)
        if v>=2**31: v-=2**32
        return not (-16<=v<=64)
    return o.startswith("L_") or o.startswith("CODE")
VOP3_ONLY=("v_fma_f32","v_cvt_pk_bf16_f32","v_lshl_add_u32","v_add3_u32","v_bfe_u32","v_mad_u32_u24","v_mbcnt","v_accvgpr","v_mfma","v_pk_","v_and_or","v_perm_b32","v_lshl_or","v_mul_lo","v_med3","v_bfi")
def isize(text):
    n=0
    for t in text.split("\n"):
        t=t.strip()
        if not t or t.endswith(":"): continue
        op,_,rest=t.partition(" "); ops=[o.strip() for o in rest.split(",")]
        if op.startswith(("ds_","buffer_","global_","s_load","s_memtime","s_memrealtime")): n+=8
        elif op.startswith(("s_waitcnt","s_barrier","s_nop","s_cbranch","s_branch","s_endpgm","s_setprio")): n+=4
        elif op.startswith("s_"): n+=8 if any(_is_lit(o) for o in ops[1:] if o) or (op.startswith("s_cmp") and _is_lit(ops[0])) else 4
        elif op.startswith(VOP3_ONLY) or "_dpp" in op or " clamp" in t: n+=8
        elif op.startswith("v_"):
            vop3 = any(o.startswith("-") and not _INL.match(o) for o in ops) or (len(ops)>2 and not op.startswith("v_cndmask") and not ops[2].split()[0].startswith("v"))
            n+=8 if vop3 or any(_is_lit(o.split()[0]) for o in ops[1:]) else 4
        else: raise ValueError(t)
    return n
```

```python
import sys, os
sys.path.insert(0, os.path.dirname(__file__))
from common import *
K=1024
def gen(diag=0, pfw=1, pfc=1, stm=2, dsp=5, kill=0, tm0=1, dbgdump=0, lsp=5, dsp0=4, el0=0, el=0, quiet=110, land=165, quiet0=110, land0=165, xsp=3, ckd=50, verbose=0, wr_lead=26, tm1=0, dset=0, xnt=1, twice=0, npre=4, bE=18, bM=20, stm0=0, nst0=2, g0=6, tsplit=0, rpl=0, ppre=48, ppost=0, prof=0, d0=0, dstep=32, bst=-1, vdone=1600, pfc2=0):
    STRIDE=254; NT=" nt" if xnt else ""
    S=Sched()
    E=lambda t,**k: (lambda i:(S.emit(i),i)[1])(A(t,**k))
    vXr,vS,vP2,vSt,vK=0,2,3,4,5
    TA,TB,T0,T1=6,10,14,15
    vXa,vXb,vW,vWr=16,17,18,20
    vRs,vRr,vFl,vT2=22,23,24,25
    vPl,vPv=10,11
    vL,vWv,vG,vU0,vU1=27,28,29,30,31
    BLK=16
    def Pacc(j,c): return ("v",32+16*j+4*c)
    def Qacc(j,c): return ("v",160+16*j+4*c) if j<6 else ("a",16*(j-6)+4*c)
    def Qhome(j,c):
        if j==8: return BLK+4*c
        return 160+16*(j if j<6 else j-6)+4*c
    WQ,WP,SP,RING,NR=32,96,192,208,12
    sX,sW,sO,sWs,sD=12,16,20,44,48
    sC1,sC2,sKh,sMask,sSc=31,32,33,34,35
    sWb,sXb,sT,sRA,sRB,sRO,sRL=36,37,38,39,40,41,42
    sSt=[52,53,54]
    OREG=[0,20*K,80*K,100*K]; EREG=[40*K,60*K,40*K,60*K]; WIN=[0,20*K,40*K,60*K]
    UNIT=[120*K+8*K*u for u in range(5)]; XUNIT=[100*K,108*K]; WB0=100*K
    stamps=[0]
    def stamp(emit=True,**k):
        if not diag: return None
        n=stamps[0]; stamps[0]+=1
        i=I(f"s_memrealtime s[{60+2*n}:{61+2*n}]\n    s_memtime s[{76+2*n}:{77+2*n}]","salu",cost=8,**k)
        if emit: S.emit(i)
        return i
    def EM(txt):
        for t in txt.strip().split("\n"): E(t.strip())
    if twice:
        EM("s_mov_b32 s94, 0\nv_mov_b32 v255, v0\nv_accvgpr_write_b32 a207, v0"); S.emit(I("L_again:","salu",cost=0))
        EM("v_accvgpr_read_b32 v0, a207") if 0 else None
    stamp()
    EM(f"""s_load_dwordx4 s[4:7], s[0:1], 0
    s_load_dwordx4 s[8:11], s[0:1], 16
    s_load_dwordx2 s[{sWs}:{sWs+1}], s[0:1], 32
    s_cmp_ge_u32 s2, 256
    s_cbranch_scc1 L_exit
    s_lshr_b32 s24, s2, 4
    s_and_b32 s25, s2, 7
    s_lshl_b32 s24, s24, 3
    s_add_u32 s24, s24, s25
    s_bfe_u32 s26, s2, 0x10003
    s_cmp_ge_u32 s24, 126
    s_cbranch_scc1 L_exit
    s_lshl_b32 s3, s24, 1
    s_add_u32 s3, s3, s26
    s_cmp_ge_u32 s24, 63
    s_cselect_b32 s27, 63, 0
    s_cselect_b32 s28, 8192000, 0
    s_sub_u32 s24, s24, s27
    s_mul_i32 s29, s24, {STRIDE*512}
    s_lshl_b32 s26, s26, 8
    v_and_b32 v{vL}, 63, v0
    v_lshrrev_b32 v{vWv}, 6, v0
    v_lshrrev_b32 v{vG}, 4, v{vL}
    v_readfirstlane_b32 s30, v{vWv}
    v_lshrrev_b32 v{vU0}, 5, v{vL}
    v_lshlrev_b32 v{vU0}, 14, v{vU0}
    v_bfe_u32 v{vU1}, v{vL}, 3, 1
    v_lshl_add_u32 v{vU0}, v{vU1}, 13, v{vU0}
    v_bfe_u32 v{vU1}, v{vL}, 4, 1
    v_lshl_add_u32 v{vU0}, v{vU1}, 12, v{vU0}
    v_bfe_u32 v{vU1}, v{vL}, 2, 1
    v_lshl_add_u32 v{vU0}, v{vU1}, 11, v{vU0}
    v_and_b32 v{vU1}, 3, v{vL}
    v_lshl_add_u32 v{vU0}, v{vU1}, 4, v{vU0}
    v_lshl_add_u32 v{vU0}, v{vWv}, 6, v{vU0}
    v_add_u32 v{vW}, s26, v{vU0}
    v_xor_b32 v{vW+1}, 32, v{vW}
    v_and_b32 v{vU0}, 1, v{vWv}
    v_lshl_add_u32 v{vU0}, v{vU0}, 2, v{vG}
    v_xor_b32 v{vU1}, v{vU0}, v{vL}
    v_and_b32 v{vU1}, 7, v{vU1}
    v_lshlrev_b32 v{vU1}, 4, v{vU1}
    v_lshl_add_u32 v{vU1}, v{vU0}, 14, v{vU1}
    v_bfe_u32 v{vU0}, v{vL}, 3, 1
    v_lshl_add_u32 v{vU1}, v{vU0}, 9, v{vU1}
    v_lshrrev_b32 v{vU0}, 1, v{vWv}
    v_mul_u32_u24 v{vU0}, 10240, v{vU0}
    v_add3_u32 v{vXb}, v{vU0}, v{vU1}, s29
    v_add_u32 v{vXa}, 0xfffff000, v{vXb}
    s_lshl_b32 s{sWb}, s30, 11
    s_lshr_b32 s{sXb}, s30, 1
    s_mul_i32 s{sXb}, s{sXb}, 10240
    s_and_b32 s{sT}, s30, 1
    s_lshl_b32 s{sT}, s{sT}, 10
    s_add_u32 s{sXb}, s{sXb}, s{sT}""")
    S.emit(I("s_waitcnt lgkmcnt(0)","wait"))
    EM(f"""s_mov_b32 s{sW}, s6
    s_mov_b32 s{sW+1}, s7
    s_mov_b32 s{sW+2}, 1310720
    s_mov_b32 s{sW+3}, 0x20000
    s_add_u32 s{sX}, s4, s28
    s_addc_u32 s{sX+1}, s5, 0
    s_mov_b32 s{sX+2}, 8192000
    s_mov_b32 s{sX+3}, 0x20000""")
    wdma={}; xdma={}; wunit={}
    def mk_wdma(key,base):
        ds,i,fg=key
        g=[A(f"s_add_u32 m0, s{sWb}, {base}"), A(f"s_mov_b32 s{sT}, {i*262144+ds*32768+fg*512}")]
        d=[A(f"buffer_load_dwordx4 v{vW+p}, s[{sW}:{sW+3}], s{sT} offen offset:{p*1024} lds") for p in range(2)]
        wdma[key]=d; wunit[key]=base; return g+d
    def mk_xdma(k,cls):
        reg=(OREG if cls else EREG)[k]; so=cls*1024+k*128
        o=[];d=[]
        for m in range(5):
            if m%2==0: o.append(A(f"s_add_u32 m0, s{sXb}, {reg+m*2048}"))
            if m in (0,4): o.append(A(f"s_mov_b32 s{sT}, {so+(4096 if m==4 else 0)}"))
            x=A(f"buffer_load_dwordx4 v{vXa if m<2 else vXb}, s[{sX}:{sX+3}], s{sT} offen offset:{(m%2)*2048}{NT} lds"); o.append(x); d.append(x)
        xdma[(k,cls)]=d; return o
    horder=[]
    for k in range(4):
        for taps,tm in (((1,3),tm0 and k==0),((0,2,4),(tm0 and k==0) or (tm1 and k==1))):
            if tm: horder+= [(2*k+e,i,fg) for e in range(2) for i in taps for fg in range(2)]
            else:  horder+= [(2*k+e,i,fg) for fg in range(2) for e in range(2) for i in taps]
    free=list(XUNIT)+list(UNIT); occ={}; prevocc={}
    wgroups={}
    NX=sum(1 for h in horder if h[0]<4)+4
    q=[]
    for n,h in enumerate(horder):
        if free: u=free.pop(0); prevocc[h]=None
        else:
            while True:
                u,ph=q.pop(0)
                if u in XUNIT and n>=NX: continue
                break
            prevocc[h]=ph
        q.append((u,h)); wgroups[h]=mk_wdma(h,u)
    for h in horder[:2]:
        for x in wgroups[h]: S.emit(x)
    for x in mk_xdma(0,1): S.emit(x)
    if pfc:
        EM(f"""s_getpc_b64 s[56:57]
        s_lshr_b32 s58, s2, 3
        s_lshl_b32 s58, s58, 11
        v_and_b32 v{vU0}, 15, v{vL}
        v_lshlrev_b32 v{vU0}, 7, v{vU0}
        v_add_u32 v{vU0}, s58, v{vU0}
        s_mov_b32 s59, CODE_LEFT
        v_min_u32 v{vU0}, s59, v{vU0}
        global_load_dword a{SP}, v{vU0}, s[56:57]""")
    def wtouch(reg, dst, nl, row0, nrows, tmp):
        per=nrows*8
        EM(f"""s_lshr_b32 s58, s2, 3
        s_lshl_b32 s58, s58, 2
        s_add_u32 s58, s58, s30
        s_mul_i32 s58, s58, {nl}
        v_min_u32 v{reg}, {nl-1}, v{vL}
        v_add_u32 v{reg}, s58, v{reg}
        v_mul_u32_u24 v{tmp}, {-(-(1<<20)//per)}, v{reg}
        v_lshrrev_b32 v{tmp}, 20, v{tmp}
        v_mul_u32_u24 v{tmp}, {2048-per}, v{tmp}
        v_add_u32 v{reg}, v{reg}, v{tmp}
        v_lshlrev_b32 v{reg}, 7, v{reg}
        v_add_u32 v{reg}, {row0*1024}, v{reg}""")
        return A(f"buffer_load_dword a{dst}, v{reg}, s[{sW}:{sW+3}], 0 offen")
    if pfw: S.emit(wtouch(vU0,SP+1,40,0,128,vU1))
    for h in horder[2:npre]:
        for x in wgroups[h]: S.emit(x)
    for x in mk_xdma(0,0): S.emit(x)
    if pfw: touch2=wtouch(vT2,SP+2,40,128,128,vU1)
    EM(f"""v_and_b32 v{vU0}, 15, v{vL}
    v_lshrrev_b32 v{vU1}, 1, v{vU0}
    v_xor_b32 v{T0}, v{vU1}, v{vG}
    v_lshlrev_b32 v{T0}, 4, v{T0}
    v_and_b32 v{T1}, 7, v{vL}
    v_lshl_add_u32 v{T0}, v{T1}, 7, v{T0}
    v_bfe_u32 v{T1}, v{vL}, 3, 1
    v_lshl_add_u32 v{vXr}, v{T1}, 10, v{T0}
    v_xor_b32 v{vXr+1}, 64, v{vXr}
    v_lshlrev_b32 v{T0}, 4, v{vL}
    v_add_u32 v{vS}, s{sXb}, v{T0}
    v_and_b32 v{T0}, 1, v{vU0}
    v_lshl_add_u32 v{T0}, v{vU1}, 5, v{T0}
    v_lshlrev_b32 v{T0}, 9, v{T0}
    v_and_b32 v{T1}, 1, v{vG}
    v_lshl_add_u32 v{T0}, v{T1}, 5, v{T0}
    v_lshrrev_b32 v{T1}, 1, v{vG}
    v_lshl_add_u32 v{T0}, v{T1}, 4, v{T0}
    v_lshl_add_u32 v{T0}, v{vWv}, 6, v{T0}
    s_add_u32 s29, s29, s26
    v_add_u32 v{vSt}, s29, v{T0}
    v_bfe_u32 v{T0}, v{vL}, 2, 1
    v_lshlrev_b32 v{T1}, 10, v{T0}
    v_lshl_add_u32 v{T1}, v{T0}, 5, v{T1}
    v_lshrrev_b32 v{T0}, 5, v{vL}
    v_lshl_add_u32 v{T1}, v{T0}, 9, v{T1}
    v_bfe_u32 v{T0}, v{vL}, 4, 1
    v_lshl_add_u32 v{T1}, v{T0}, 7, v{T1}
    v_bfe_u32 v{T0}, v{vL}, 3, 1
    v_lshl_add_u32 v{T1}, v{T0}, 6, v{T1}
    v_and_b32 v{T0}, 3, v{vL}
    v_lshl_add_u32 v{T1}, v{T0}, 3, v{T1}
    s_add_u32 s58, s{sWb}, {WB0}
    v_add_u32 v{vWr}, s58, v{T1}
    v_xor_b32 v{vWr+1}, 32, v{vWr}
    v_lshlrev_b32 v{vP2}, 4, v{vL}
    s_lshl_b32 s58, s26, 6
    s_lshl_b32 s59, s30, 12
    s_add_u32 s58, s58, s59
    v_add_u32 v{vP2}, s58, v{vP2}
    v_mov_b32 v{vK}, 0xc1800000
    v_lshrrev_b32 v{T0}, 1, v{vL}
    v_and_b32 v{T1}, 1, v{vL}
    v_lshlrev_b32 v{T1}, 4, v{T1}
    v_lshl_add_u32 v{vRs}, v{T0}, 10, v{T1}
    v_lshlrev_b32 v{T0}, 3, v{vU0}
    v_lshl_add_u32 v{T0}, v{vG}, 8, v{T0}
    s_add_u32 s{sRL}, s{sWb}, {OREG[2]}
    v_add_u32 v{vRr}, s{sRL}, v{T0}
    s_lshr_b32 s58, s3, 3
    s_mul_i32 s59, s58, 0x5556
    s_lshr_b32 s59, s59, 16
    s_mul_i32 s{sRA}, s59, 3
    s_sub_u32 s58, s58, s{sRA}
    s_lshl_b32 s59, s59, 15
    s_lshl_b32 s{sRA}, s58, 19
    s_add_u32 s{sRA}, s{sRA}, s59
    s_and_b32 s59, s3, 7
    s_lshl_b32 s59, s59, 6
    s_add_u32 s{sRA}, s{sRA}, s59
    s_and_b32 s59, s30, 1
    s_lshl_b32 s59, s59, 5
    s_add_u32 s{sRA}, s{sRA}, s59
    s_lshr_b32 s59, s30, 1
    s_lshl_b32 s59, s59, 9
    s_add_u32 s{sRA}, s{sRA}, s59
    s_sub_u32 s{sRB}, s{sRA}, 262144
    s_cmp_eq_u32 s58, 0
    s_cselect_b32 s{sRB}, 0x40000000, s{sRB}
    s_lshl_b32 s{sRO}, s3, 12
    s_lshl_b32 s59, s30, 10
    s_add_u32 s{sRO}, s{sRO}, s59
    s_cmp_ge_u32 s3, 192
    s_cselect_b32 s{sRA}, 0x40000000, s{sRA}
    s_cselect_b32 s{sRB}, 0x40000000, s{sRB}
    s_cselect_b32 s59, 1, s30
    s_cmp_lt_u32 s30, 2
    s_mov_b32 s{sSc}, 0xbfb8aa3b
    s_cselect_b32 s{sSc}, 0x4038aa3b, s{sSc}
    v_or_b32 v{T0}, s59, v{vL}
    s_and_b32 s58, s3, 3
    s_lshl_b32 s58, s58, 6
    v_mov_b32 v{vFl}, s58
    v_cmp_ne_u32 vcc, 0, v{T0}
    v_mov_b32 v{T1}, 0x40000000
    s_nop 0
    v_cndmask_b32 v{vFl}, v{vFl}, v{T1}, vcc
    s_add_u32 s{sO}, s8, s28
    s_addc_u32 s{sO+1}, s9, 0
    s_mov_b32 s{sO+2}, 8192000
    s_mov_b32 s{sO+3}, 0x20000
    s_mov_b32 s{sD}, s10
    s_mov_b32 s{sD+1}, s11
    s_mov_b32 s{sD+2}, 256
    s_mov_b32 s{sD+3}, 0x20000
    s_mov_b32 s{sWs+2}, 786432
    s_mov_b32 s{sWs+3}, 0x20000
    s_mov_b32 s{sC1}, 0xc038aa3b
    s_mov_b32 s{sC2}, 0xbfb8aa3b
    s_mov_b32 s{sKh}, 0x47000000
    s_mov_b32 s{sMask}, 0xffff0000
    s_mov_b32 s{sSt[0]}, 4096
    s_mov_b32 s{sSt[1]}, 8192
    s_mov_b32 s{sSt[2]}, 12288""")
    S.emit(I("s_branch L_main\n.p2align 12\nL_main:","salu")) if 0 else None
    bb=[]
    mark={}
    def part(kind,k,tm):
        taps=(1,3) if kind=="Q" else (0,2,4); cls=1 if kind=="Q" else 0
        if tm:
            for e in range(2):
                for i in taps:
                    for j in range(8):
                        for c in range(4): bb.append(((kind,j,c),("w",2*k+e,i,c),(k,cls,j+i//2,e,i)))
        else:
            fl=0
            for j in range(8):
                cs=[0,1,2,3]
                if j%2 and j!=7: cs=cs[::-1]
                for c in cs:
                    seq=[(e,i) for e in range(2) for i in (taps if e==0 else taps[::-1])]
                    if fl: seq=seq[::-1]
                    fl^=1
                    for e,i in seq: bb.append(((kind,j,c),("w",2*k+e,i,c),(k,cls,j+i//2,e,0)))
    for k in range(4):
        mark[("Q",k)]=len(bb); part("Q",k,tm0 and k==0)
        mark[("P",k)]=len(bb); part("P",k,(tm0 and k==0) or (tm1 and k==1))
    mark["R"]=len(bb)
    prods=[(ds,t) for ds in range(8) for t in range(3)]
    cuts=[0,g0,9,12,15,24]
    for gi,gk in enumerate((0,2,3,4,5)):
        g=prods[cuts[gi]:cuts[gi+1]]; dss=sorted({p[0] for p in g})
        mark[("R",gk)]=len(bb)
        fl=0
        for j in range(8):
            cs=[0,2,1,3]
            if gi<4 and j%2 and j!=7: cs=cs[::-1]
            if j==0 and len(dss)>1:
                for ds in dss:
                    for c in cs:
                        for d2,t in g:
                            if d2==ds: bb.append((("P",j,c),("r",ds,t,c),(ds//2,2,j+t,ds%2,gi)))
                continue
            for c in cs:
                seq=[]
                for n,ds in enumerate(dss):
                    q_=[p for p in g if p[0]==ds]; seq+= q_ if n%2==0 else q_[::-1]
                if fl: seq=seq[::-1]
                fl^=1
                for ds,t in seq: bb.append((("P",j,c),("r",ds,t,c),(ds//2,2,j+t,ds%2,gi)))
    N=len(bb); assert N==2048
    first={}; last={}; last1={}
    for n,(a,w,x) in enumerate(bb):
        for key in (a,w,("x",x)):
            first.setdefault(key,n); last[key]=n
        if n<mark["R"]: last1[a]=n
    first2={}
    for n in range(mark["R"],N): first2.setdefault(bb[n][0],n)
    endP=lambda k: mark[("Q",k+1)] if k<3 else mark["R"]
    xg={(k,cls):mk_xdma(k,cls) for k in range(1,4) for cls in (1,0)}
    bar0=A("s_barrier",needs=xdma[(0,1)])
    barM={k:A("s_barrier",needs=list(xdma[(k,0)]),after=mark[("P",k)]-bM,before=mark[("P",k)]-bM+6) for k in range(4)}
    barE={k:A("s_barrier",needs=list(xdma[(k+1,1)]) if k<3 else [],after=endP(k)-bE,before=endP(k)-bE+6) for k in range(3)}
    barS=A("s_barrier",after=mark[("R",4)]+10,before=mark[("R",5)]-40)
    def rebase(d,regs,**k): return [A(f"v_add_u32 v{r}, {d&0xffffffff:#x}, v{r}",**k) for r in regs]
    reb={}
    for k in range(3): reb[k+1]=rebase(20*K,(vXr,vXr+1),needs=[barE[k]])
    reb[4]=rebase(-60*K,(vXr,vXr+1))
    reb[5]=rebase(60*K,(vXr,vXr+1))
    xorder=sorted({b[2] for b in bb}, key=lambda x:first[("x",x)])
    slots=[(-1,RING+4*s) for s in range(NR)]
    xslot={}; xread={}; st_xr=[]; curwin=0
    for x in xorder:
        k,cls,a,e,_=x
        slots.sort(); aft,reg=slots.pop(0); slots.append((last[("x",x)],reg)); xslot[x]=reg
        f=first[("x",x)]
        if cls<2: win=k; base=(OREG if cls else EREG)[k]-WIN[k]; nd=[(bar0 if k==0 else barE[k-1]) if cls else barM[k]]
        else:
            win=4 if k<2 else 5; base=OREG[k]-(0 if k<2 else 60*K); nd=[barM[3]] if k<3 else [barS]
        if win!=curwin:
            for r in reb[win]: r.after=max(aft,f-40)-1; st_xr.append(r)
            curwin=win
        ins=A(f"ds_read_b128 a[{reg}:{reg+3}], v{vXr+e} offset:{base+a*2048}", needs=nd, after=max(aft,f-40), before=max(f-9,aft+1))
        xread[x]=ins; st_xr.append(ins)
    for k in range(4):
        lo=[xread[x] for x in xorder if x[0]==k and x[1]==1][-1]; barM[k].needs.append(lo)

    def wreg(ds,i,c):
        e=ds%2
        return (WQ+32*e+16*(i//2)+4*c) if i%2 else (WP+48*e+16*(i//2)+4*c)
    wread={}; st_wr=[]; prevw={}; hreads={}
    for h in horder:
        ds,i,fg=h
        for cp in range(2):
            c=2*fg+cp; reg=wreg(ds,i,c); key=("w",ds,i,c)
            aft=prevw.get(reg,-1); prevw[reg]=last[key]
            for hh in range(2):
                ins=A(f"ds_read_b64_tr_b16 a[{reg+2*hh}:{reg+2*hh+1}], v{vWr+cp} offset:{wunit[h]-WB0+hh*256}", needs=wdma[h], after=aft, before=max(first[key]-9,aft+1))
                wread.setdefault(key,[]).append(ins); hreads.setdefault(h,[]).append(ins); st_wr.append(ins)
    st_vm=[]; tl=[-dsp]
    def put(lst,t,sp=dsp):
        for x in lst:
            if x.kind in VM:
                tl[0]=max(t,tl[0]+sp); x.after=tl[0]
            else: x.after=max(t-1,tl[0]+sp-2)
            st_vm.append(x)
        return tl[0]
    rp_d=[A(f"s_mov_b32 m0, s{sRL}"),A(f"buffer_load_dwordx4 v{vRs}, s[{sW}:{sW+3}], s{sRA} offen lds"),
          A(f"s_add_u32 m0, s{sRL}, 1024"),A(f"buffer_load_dwordx4 v{vRs}, s[{sW}:{sW+3}], s{sRB} offen lds")]
    flag=A(f"buffer_atomic_add v{vT2}, v{vFl}, s[{sD}:{sD+3}], 0 offen")
    poll=A(f"buffer_load_dword v{vPv}, v{vPl}, s[{sD}:{sD+3}], 0 offen sc1")
    RP=28
    rst=A(f"buffer_store_dwordx4 v[{RP}:{RP+3}], v{vRr}, s[{sWs}:{sWs+3}], s{sRO} offen sc1")
    rdt={}; epi={}
    for k in range(3):
        lastQ=max(n for n,h in enumerate(horder) if h[0]//2==k+1 and h[1]%2==1)
        epi[lastQ+1-(el if k else el0)]=k
    for h in horder[:npre]: rdt[h]=-1
    notbefore=-1
    for n,h in enumerate(horder):
        sp=dsp0 if h[0]<2 or (h[0]<4 and h[1]%2) else dsp
        if n in epi:
            k=epi[n]
            t0=max(tl[0]+sp, mark[("P",k)]+1)
            pre=[([] if rpl else rp_d)+([touch2] if pfw else []),[rst],[flag]][k]
            xg[(k+1,0)][2].needs.append(barM[k])
            if k==2: xg[(3,1)][2].needs+= [r for hh in horder if wunit[hh] in XUNIT for r in hreads[hh]]+[barM[2]]
            if k==1: xg[(2,1)][2].needs.append(barM[1])
            put(pre+xg[(k+1,1)]+xg[(k+1,0)],t0,xsp)
            tl[0]=max(tl[0],t0+(quiet if k else quiet0)); notbefore=t0+(land if k else land0)
            if k==0 and rpl: put(rp_d,tl[0],6)
            if verbose: print("episode",k,t0,file=sys.stderr)
        if n<npre: continue
        ph=prevocc[h]
        t=-1 if ph is None else rdt[ph]+8
        if ph is not None: wgroups[h][2].needs+=hreads[ph]
        t=put(wgroups[h],t,sp)
        r=max(t+wr_lead,max(x.after for x in hreads[h]),notbefore,max(rdt.values()))
        dl=min(x.before for x in hreads[h])
        r=min(r,dl-3)
        for x in hreads[h]: x.after=max(x.after,min(r,x.before-1))
        rdt[h]=r+2
        if verbose: print(h,"dma",t,"read",r,"need",min(first[("w",h[0],h[1],2*h[2]+cp)] for cp in range(2)),file=sys.stderr)
    lastW=st_vm[-1]
    tpoll=put([poll],-1)
    st_s=[]
    def addpair(q,scale):
        a,b=TA+q,TB+q
        o=[f"v_lshlrev_b32 v{T0}, 16, v{a}",f"v_lshlrev_b32 v{T1}, 16, v{b}",f"v_and_b32 v{a}, s{sMask}, v{a}",f"v_and_b32 v{b}, s{sMask}, v{b}",
           f"v_add_f32 v{T0}, v{T0}, v{T1}",f"v_add_f32 v{a}, v{a}, v{b}"]
        if scale: o+=[f"v_mul_f32 v{T0}, s{sSc}, v{T0}",f"v_mul_f32 v{a}, s{sSc}, v{a}"]
        o.append(f"v_cvt_pk_bf16_f32 v{RP+q if scale else a}, v{T0}, v{a}")
        return o
    swr={}
    for k in range(4):
        t0=mark[("P",k)]+4 if k<3 else mark["R"]+60
        if k: st_s.append(A(f"v_add_u32 v{vS}, {20*K}, v{vS}",after=t0-4))
        for m in range(5):
            st_s.append(A(f"ds_read_b128 v[{TA}:{TA+3}], v{vS} offset:{EREG[k]-WIN[k]+m*2048}",needs=[barM[k]],after=t0))
            st_s.append(A(f"ds_read_b128 v[{TB}:{TB+3}], v{vS} offset:{OREG[k]-WIN[k]+m*2048}",after=t0))
            for q in range(4):
                for o in addpair(q,False): st_s.append(A(o,after=t0))
            w=A(f"ds_write_b128 v{vS}, v[{TA}:{TA+3}] offset:{OREG[k]-WIN[k]+m*2048}",after=t0,cost=8); st_s.append(w); swr[(k,m)]=w
        (barM[k+1] if k<3 else barS).needs.append(swr[(k,4)])
        if k==0:
            tr=max(rp_d[3].after+40,xdma[(1,1)][0].after+land0)
            for p,Tn in enumerate((TA,TB)):
                for hh in range(2):
                    st_s.append(A(f"ds_read_b64_tr_b16 v[{Tn+2*hh}:{Tn+2*hh+1}], v{vRr} offset:{p*1024+hh*128}",needs=[rp_d[1],rp_d[3]],after=tr))
            barM[1].needs.append(st_s[-1])
            for q in range(4):
                for o in addpair(q,True): st_s.append(A(o,after=tr))
            st_s.append(A(f"v_lshlrev_b32 v{vRr}, 4, v{vL}",after=tr)); rst.needs.append(st_s[-1])
            st_s.append(A(f"v_mov_b32 v{vT2}, 1",after=tr,needs=[touch2] if pfw else [])); flag.needs+=[st_s[-1],barM[2]]
            barE[1].needs.append(rst)
    tc=max(tpoll+ckd,mark[("P",3)]-15)
    chk=[A(f"v_cmp_ne_u32 vcc, 48, v{vPv}",after=tc,before=tc+3,needs=[poll]),I("s_cbranch_vccnz L_spin\nL_back:","salu",rd=["vcc"],after=tc+5,before=tc+8)]
    Qfree={}
    pool=[]
    for r in range(WQ,SP,4): pool.append([prevw[r],r])
    for r in range(SP,SP+16,4): pool.append([mark[("P",3)],r])
    st_tr=[]; qread={}
    def cq(j,aft,nd=()):
        o=[]
        for c in range(4):
            kind,src=Qacc(j,c); h=Qhome(j,c)
            for q in range(4):
                if kind=="a":
                    x=A(f"v_accvgpr_read_b32 v{h+q}, a{src+q}",after=aft,needs=list(nd)); o.append(x); qread[src+q]=x
            for q in range(4):
                o.append(A(f"v_fma_f32 v{h+q}, s{sC1}, v{h+q}, v{vK}" if c<2 else f"v_mul_f32 v{h+q}, s{sC2}, v{h+q}",after=max(aft,last1[("Q",j,c)]+3)))
        return o
    def yt(j):
        o=[]
        for c in (0,2,1,3):
            p=Pacc(j,c)[1]; h=Qhome(j,c); h1=Qhome(j+1,c); aft=last1[("P",j,c)]+3
            sc=sC1 if c<2 else sC2
            for q in range(4): o.append(A(f"v_fma_f32 v{h+q}, s{sc}, v{p+q}, v{h+q}",after=aft))
            for q in range(4):
                o.append(A(f"v_fma_f32 v{p+q}, s{sc}, v{p+q}, v{h1+q}" if c<2 else f"v_fma_f32 v{p+q}, -s{sc}, v{p+q}, -v{h1+q}",after=aft,before=first2[("P",j,c)]-2))
        return o
    ystore={}
    def epi_tile(base,j,neg,aftf,nd):
        o=[]
        for cp in range(2):
            F,G=base[cp],base[2+cp]; aft=aftf(cp)
            ops=[f"v_exp_f32 v{G+q}, v{G+q}" for q in range(4)]
            ops+=[f"v_exp_f32 v{F+q}, v{F+q} clamp" for q in range(4)]
            ops+=[f"v_fma_f32 v{F+q}, v{F+q}, s{sKh}, 0.5" for q in range(4)]
            ops+=[f"v_fma_f32 v{G+q}, v{F+q}, v{G+q}, v{F+q}" for q in range(4)]
            ops+=[f"v_rcp_f32 v{G+q}, v{G+q}" for q in range(4)]
            ops+=[(f"v_fma_f32 v{G+q}, v{F+q}, v{G+q}, -v{G+q}" if neg else f"v_fma_f32 v{G+q}, -v{F+q}, v{G+q}, v{G+q}") for q in range(4)]
            P=base[0]
            ops+=[f"v_cvt_pk_bf16_f32 v{P+2*cp}, v{G}, v{G+1}",f"v_cvt_pk_bf16_f32 v{P+2*cp+1}, v{G+2}, v{G+3}"]
            if cp==1:
                ops+=[f"v_permlane16_swap_b32 v{P}, v{P+2}",f"v_permlane16_swap_b32 v{P+1}, v{P+3}"]
                so="0" if j<4 else f"s{sSt[j//4-1]}"
                ops.append(f"buffer_store_dwordx4 v[{P}:{P+3}], v{vK if j==15 else vSt}, s[{sO}:{sO+3}], {so} offen offset:{(j%4)*1024}"+["", " nt", " sc1", " sc0 sc1"][stm0 if (j%2==0 and j//2<nst0) else stm])
            l=[A(t,after=aft) for t in ops]
            l[0].needs+=nd(cp); o+=l
        ystore[j]=o[-1]
        return o
    YT={j:yt(j) for j in range(8)}
    st_ep=[]
    for j in range(8):
        st_ep+=epi_tile([Qhome(j,c) for c in range(4)],2*j,False,lambda cp:-1,lambda cp,j=j:[YT[j][8*(2*cp+1)+3]]+([YT[j-1][-1]] if j else []))
    tch=[A(f"s_lshr_b32 s58, s2, 3"),A("s_lshl_b32 s58, s58, 2"),A("s_add_u32 s58, s58, s30"),A("s_mul_i32 s58, s58, 6144"),
         A(f"v_min_u32 v{T0}, 47, v{vL}"),A(f"v_lshlrev_b32 v{T0}, 7, v{T0}"),A(f"buffer_load_dword v{T1}, v{T0}, s[{sWs}:{sWs+3}], s58 offen sc1")]
    padr=[A(f"v_and_b32 v{vPl}, 3, v{vL}"),A(f"v_lshlrev_b32 v{vPl}, 6, v{vPl}")]+tch[:-1]; poll.needs.append(padr[1])
    for j in range(6): st_tr+=cq(j,-1)
    lastB=max(st_wr[-1].before, mark[("P",3)])
    for c in range(4):
        for q in range(4):
            st_tr.append(A(f"v_mov_b32_dpp v{BLK+4*c+q}, v{Qhome(0,c)+q} row_shl:2 row_mask:0xf bank_mask:0xf bound_ctrl:0",after=lastB,needs=[st_wr[-1],lastW,padr[-1]]))
    for j in range(8):
        if j==5: st_tr+=cq(6,-1,[ystore[0]])
        if j==6: st_tr+=cq(7,-1,[ystore[2]])
        st_tr+=YT[j]
    st_tr+=[A(f"v_mbcnt_lo_u32_b32 v{vK}, -1, 0"),A(f"v_mbcnt_hi_u32_b32 v{vK}, -1, v{vK}"),A(f"v_and_b32 v{vK}, 14, v{vK}"),A(f"v_add_u32 v{vK}, 2, v{vK}"),
            A(f"v_and_b32 v{vK}, 16, v{vK}"),A(f"v_lshlrev_b32 v{vK}, 26, v{vK}"),A(f"v_or_b32 v{vK}, v{vK}, v{vSt}")]
    for j in range(8):
        st_ep+=epi_tile([Pacc(j,c)[1] for c in range(4)],2*j+1,True,lambda cp,j=j:max(last[("P",j,cp)],last[("P",j,2+cp)])+3,lambda cp:[st_tr[-1]])
    for r in range(0,32,4): pool.append([first2[("P",5+r//16,0)]+2,r])
    rkeys=sorted({b[1] for b in bb if b[1][0]=="r"},key=lambda w:(w[1],w[2],first[w]))
    rreg={}; rload={}; st_r=[]
    tl[0]=max(tl[0],mark[("P",3)],tc+6)
    i0=st_s.index(swr[(2,4)])+1
    if pfw:
        tch[-1].needs.append(chk[-1]); tch[-1].after=tc+5; tch[-1].before=tc+10
        st_s[i0:i0]=padr+[tch[-1]]
    else: st_s[i0:i0]=padr
    cur=None
    for w in rkeys:
        _,ds,t,c=w
        pool.sort(); aft,reg=pool.pop(0); pool.append([last[w],reg]); rreg[w]=reg
        lst=[]
        if cur!=(ds,t): lst.append(A(f"s_mov_b32 s{sT}, {(ds*3+t)*32768}")); cur=(ds,t)
        ld=A(f"buffer_load_dwordx4 a[{reg}:{reg+3}], v{vP2}, s[{sWs}:{sWs+3}], s{sT} offen offset:{c*1024} sc1",needs=[chk[-1]]+([qread[reg+3]] if reg<32 else []))
        lst.append(ld); rload[w]=ld
        put(lst,aft,lsp)
        ld.before=max(first[w]-4,ld.after+1)
        if verbose: print(w,"reg",reg,"ld",ld.after,"need",first[w],file=sys.stderr)
    back=[]
    for n,(a,w,x) in enumerate(bb):
        kd,r=(Pacc if a[0]=="P" else Qacc)(a[1],a[2]); xr=xslot[x]
        if w[0]=="w": wr=wreg(*w[1:]); nd=wread[w]
        else: wr=rreg[w]; nd=[rload[w]]
        cin="0" if first[a]==n else f"{kd}[{r}:{r+3}]"
        nd=[xread[x]]+nd
        if first2.get(a)==n: nd=nd+[y for y in YT[a[1]] if f"v{r}" in y.wr or f"v{r+3}" in y.wr]
        back.append(A(f"v_mfma_f32_16x16x32_bf16 {kd}[{r}:{r+3}], a[{wr}:{wr+3}], a[{xr}:{xr+3}], {cin}",needs=nd))
    st_bar=[]
    for k in range(4): st_bar+=[barM[k]]+([barE[k]] if k<3 else chk)
    st_bar.append(barS)
    st_diag=[]
    if bst>=0:
        nb=[]
        for b in st_bar:
            if b is barM[bst] or b is barE[bst]:
                a=stamp(emit=False,after=b.after-1,before=b.after); w=stamp(emit=False,after=b.after,before=b.before,needs=list(b.needs)); c=stamp(emit=False,after=b.after,before=b.before+1)
                b.note="bar"; nb+=[a,w,b,c]; w.cost=0; b.cost=0; c.cost=0
            else: nb.append(b)
        st_bar=nb
    elif prof:
        for i in range(20): st_diag.append(I(f"s_memtime s[{60+2*i}:{61+2*i}]","stamp",after=min(N-1,d0+dstep*i),before=min(N-1,d0+dstep*i)+1))
    elif diag:
        for pos in [(0,mark[("Q",1)],mark[("Q",2)],mark["R"],mark[("R",5)],N-1),
                    (0,mark[("P",0)],mark[("Q",1)],mark[("P",1)],mark[("Q",2)],mark[("P",2)]),
                    (mark[("P",2)],mark[("Q",3)],mark[("P",3)],mark["R"],mark[("R",2)],mark[("R",3)]),
                    (mark[("R",2)],mark[("R",3)],mark[("R",4)],mark[("R",5)],mark[("R",5)]+144,N-1),
                    [d0+dstep*i for i in range(6)],(0,N-1),(0,d0,N-1)][dset]: st_diag.append(stamp(emit=False,after=pos,before=pos+1))
    br=I("s_branch L_main","salu"); S.emit(br); br.text+="\n.p2align 12\nL_main:"; S.off=0; S.pre=ppre; S.post=ppost
    for x in st_wr[:8]: S.emit(x)
    st_wr=st_wr[8:]
    S.emit(bar0)
    for x in st_xr[:6]: S.emit(x)
    st_xr=st_xr[6:]
    S.vm_lat=16*wr_lead
    S.hooks[mark['R']-10]=lambda S: setattr(S,'vm_done',vdone)
    S.run(back,[st_bar,st_xr,st_wr,st_vm,st_diag,st_tr,st_s,st_ep],soft=[2,None,6,1,None,None,None,None])
    if twice:
        EM(f"""s_waitcnt vmcnt(0) lgkmcnt(0)
        s_barrier
        v_mbcnt_lo_u32_b32 v0, -1, 0
        v_mbcnt_hi_u32_b32 v0, -1, v0
        s_lshl_b32 s95, s30, 6
        v_add_u32 v0, s95, v0
        s_add_u32 s94, s94, 1
        s_cmp_eq_u32 s94, 1
        s_cbranch_scc1 L_again""")
        S.emit(I("L_done2:","salu",cost=0))
    if diag:
        while stamps[0]<8: stamp()
        EM(f"""s_waitcnt lgkmcnt(0)
        s_mov_b32 s{sWs+2}, 0x2000000
        s_lshl_b32 s3, s2, 2
        s_add_u32 s3, s3, s30
        s_lshl_b32 s3, s3, 7
        s_add_u32 s3, s3, 0x1000000
        v_mov_b32 v2, s3
        s_mov_b64 exec, 1""")
        for k in range(32):
            E(f"v_mov_b32 v3, s{60+k}"); E(f"buffer_store_dword v3, v2, s[{sWs}:{sWs+3}], 0 offen offset:{4*k}"); E("s_nop 1")
    if prof:
        EM(f"""s_waitcnt lgkmcnt(0)
        s_mov_b32 s{sWs+2}, 0x2000000
        s_lshl_b32 s3, s2, 2
        s_add_u32 s3, s3, s30
        s_lshl_b32 s3, s3, 7
        s_add_u32 s3, s3, 0x1000000
        v_mov_b32 v2, s3
        s_mov_b64 exec, 1""")
        for k in range(20):
            E(f"v_mov_b32 v3, s{60+2*k}"); E(f"buffer_store_dword v3, v2, s[{sWs}:{sWs+3}], 0 offen offset:{4*k}"); E("s_nop 1")
    if kill:
        f0=back[0].idx; ss_=set(st_s); se_=set(st_ep); sr_=set(st_tr)
        def keep(x):
            if x.idx<f0: return True
            if kill&1 and x.kind=="bar": return False
            if kill&2 and x.kind=="dma" and f"s[{sW}:" in x.text: return False
            if kill&4 and x.kind=="dma" and f"s[{sX}:" in x.text: return False
            if kill&8 and "tr_b16" in x.text: return False
            if kill&16 and "ds_read_b128" in x.text: return False
            if kill&32 and x.kind=="vld" and "dwordx4" in x.text: return False
            if kill&64 and x.kind=="vst" and f"s[{sO}:" in x.text: return False
            if kill&128 and "atomic" in x.text: return False
            if kill&128 and "L_spin" in x.text: x.text="s_nop 0\nL_back:"
            if kill&1024 and x in ss_ and x.kind!="vld": return False
            if kill&2048 and x in se_ and x.kind!="vst": return False
            if kill&4096 and x in sr_: return False
            if kill&8192 and x.kind=="salu" and ("m0" in x.text or f"s_mov_b32 s{sT}," in x.text): return False
            if kill&16384 and x.kind=="wait" : return False
            if kill&512 and (x in rp_d or x is touch2): return False
            if kill&256 and x.kind=="vst" and f"s[{sWs}:" in x.text and "dwordx4" in x.text: return False
            return True
        S.out=[x for x in S.out if keep(x)]
    print(f"; est cycles {S.t} waits {S.nwait} nops {S.nnop} over {S.over} n {len(S.out)} bytes {S.off} tail {S.t-back[-1].t}", file=sys.stderr)
    if verbose: print(S.overlog,file=sys.stderr)
    body=S.text().replace("s_getpc_b64 s[56:57]","s_getpc_b64 s[56:57]\nL_pc:").replace("CODE_LEFT","L_code_end-L_pc-4").replace("s_getpc_b64 s[92:93]","s_getpc_b64 s[92:93]\nL_here:")
    body+=f"""
    s_endpgm
L_spin:
    s_mov_b32 s59, 0x40000
L_spin1:
    buffer_load_dword v{vPv}, v{vPl}, s[{sD}:{sD+3}], 0 offen sc1
    s_waitcnt vmcnt(0)
    v_cmp_ne_u32 vcc, 48, v{vPv}
    s_sub_u32 s59, s59, 1
    s_cmp_eq_u32 s59, 0
    s_cbranch_scc1 L_back
    s_nop 1
    s_cbranch_vccnz L_spin1
    s_branch L_back"""
    return wrap(body,"; dilated causal conv, two-phase fast-FIR form (8 products per output pair), gate fused\n",sgpr=102 if prof else 96)

if __name__=="__main__":
    kw={}
    for o in sys.argv[2:]:
        k,v=o.split("="); kw[k]=int(v)
    t=gen(**kw)
    open(sys.argv[1],"w").write(t)
```

```python
import re

def R(kind, lo, n=1):
    return [f"{kind}{lo+i}" for i in range(n)]
def rs(kind, lo, n):
    return f"{kind}{lo}" if n == 1 else f"{kind}[{lo}:{lo+n-1}]"

class I:
    __slots__ = ("text","kind","cost","rd","wr","needs","after","before","srcc","t","idx","note","m0","soft","flex","ordr","hard")
    def __init__(self, text, kind, rd=(), wr=(), needs=(), after=-1, before=None, srcc=(), cost=None, note=None, ordr=()):
        self.text=text; self.kind=kind; self.rd=set(rd); self.wr=set(wr); self.needs=list(needs)
        self.after=after; self.before=before; self.srcc=set(srcc); self.note=note
        self.cost = cost if cost is not None else (8 if kind in ("trans","mfma","perm") else 4)
        self.t=None; self.idx=None; self.soft=False; self.flex=False; self.ordr=list(ordr); self.hard=-1
    def __repr__(self): return self.text

VALU=("valu","trans","perm","dpp")
LGKM=("dsr","dsw")
VM=("dma","vld","vst")
SCAL=("salu","wait","nop","bar","stamp")

class Sched:
    def __init__(self, lds_done=200, verbose=False):
        self.out=[]; self.lg=[]; self.vm=[]; self.t=0
        self.pend={}
        self.lds_done=lds_done
        self.overlog=[]; self.memfirst=True; self.shadow=True; self.lead=0; self.left=[]; self.off=0; self.pre=0; self.post=0; self.vm_lat=400; self.vm_done=None; self.st_done=4000; self.hooks={}; self.nwait=0; self.nnop=0; self.over=0
        self.mf_free=0
    def hazard(self, ins):
        need=0; states=0
        for p in reversed(self.out[-24:]):
            req=0
            if p.kind=="mfma":
                if ins.kind=="mfma":
                    if p.wr & (ins.rd - ins.srcc): req=8
                    elif p.wr & ins.srcc and p.wr != ins.srcc: req=6
                elif ins.kind in VALU:
                    if p.wr & (ins.rd|ins.wr): req=8
                    elif p.srcc & ins.wr: req=3
                elif ins.kind in LGKM or ins.kind in VM:
                    if p.wr & (ins.rd|ins.wr): req=8
            elif p.kind in VALU:
                if ins.kind=="mfma" and p.wr & ins.rd: req=2
                elif ins.kind in ("perm","dpp") and p.wr & (ins.rd): req=2
                elif p.kind=="trans" and ins.kind in VALU and p.wr & ins.rd: req=1
                if ins.kind in VM and any(r[0]=="s" for r in p.wr & ins.rd): req=max(req,5)
                if ins.kind in VALU and any(r[0]=="s" or r=="vcc" for r in p.wr & ins.rd): req=max(req,2)
            elif p.kind=="vst":
                if p.rd & ins.wr: req=2
            elif p.kind=="dsw":
                if p.rd & ins.wr: req=1
            elif p.kind=="salu":
                if "m0" in p.wr and ins.kind=="dma": req=1
            need=max(need, req-states)
            if p.kind=="nop": states+=p.cost//4
            else: states+=1
        return need
    def waits(self, ins):
        deps=set(ins.needs)
        for r in ins.rd|ins.wr:
            if r in self.pend: deps.add(self.pend[r])
        lg=vm=None
        for d in deps:
            if d in self.lg:
                n=len(self.lg)-1-self.lg.index(d); lg=n if lg is None else min(lg,n)
            elif d in self.vm:
                n=len(self.vm)-1-self.vm.index(d); vm=n if vm is None else min(vm,n)
            else:
                assert d.idx is not None, f"{ins} needs un-emitted {d}"
        return lg,vm
    def _retire(self, q, n):
        done=q[:len(q)-n] if n<len(q) else []
        del q[:len(done)]
        for d in done:
            for r in d.wr:
                if self.pend.get(r) is d: del self.pend[r]
    def raw(self, ins):
        ins.idx=len(self.out); self.off+=isize(ins.text)
        if ins.kind=="mfma":
            self.t=max(self.t, self.mf_free); self.mf_free=self.t+16
        sh = ins.kind in SCAL and ins.cost==4 and self.out and self.out[-1].kind=="mfma"
        ins.t=self.t-(4 if sh else 0); self.t+=0 if sh else ins.cost
        self.out.append(ins)
        if ins.kind in LGKM: self.lg.append(ins)
        elif ins.kind in VM: self.vm.append(ins)
        if ins.kind in ("dsr","vld"):
            for r in ins.wr: self.pend[r]=ins
    def emit(self, ins):
        self.emit_wait(ins)
        h=self.hazard(ins)
        if h>0:
            self.raw(I(f"s_nop {h-1}","nop",cost=4*h)); self.nnop+=h
        self.raw(ins)
    def emit_wait(self, ins):
        lg,vm=self.waits(ins)
        if lg is not None or vm is not None:
            s="s_waitcnt"
            if vm is not None:
                if self.vm_done:
                    k=0
                    for d in self.vm:
                        if self.t-d.t<(self.st_done if d.kind=="vst" else self.vm_done): break
                        k+=1
                    vm=min(vm,len(self.vm)-k)
                vm=min(vm,63); s+=f" vmcnt({vm})"; self._retire(self.vm,vm)
            young=sum(1 for d in self.lg if self.t-d.t<self.lds_done)
            if lg is None and young<len(self.lg): lg=young
            if lg is not None:
                lg=min(lg,young,15); extra=2*sum(1 for d in self.out[-40:] if d.kind=="stamp" and self.t-d.t<260)
                s+=f" lgkmcnt({min(15,lg+extra)})"; self._retire(self.lg,lg)
            self.raw(I(s,"wait")); self.nwait+=1
    def cost_of(self, ins):
        lg,vm=self.waits(ins); w=lg is not None or vm is not None
        c=ins.cost+(4 if w else 0)
        if self.shadow and self.out and self.out[-1].kind=="mfma" and (w or (ins.kind in SCAL and ins.cost==4)): c-=4
        return c
    def young_dep(self, ins, lat=150):
        deps=set(ins.needs)
        for r in ins.rd|ins.wr:
            if r in self.pend: deps.add(self.pend[r])
        return any((d in self.lg and self.t-d.t<lat) or (d in self.vm and self.t-d.t<self.vm_lat) for d in deps)
    def ready_needs(self, ins):
        return all(d.idx is not None for d in ins.needs) and all(d.idx is not None for d in ins.ordr)
    def run(self, backbone, streams, budget=8, soft=None):
        pos=[0]*len(streams)
        for s in streams:
            for x in s:
                if x.before is None: x.before=10**9
        ch=True
        while ch:
            ch=False
            for s in streams:
                d=10**9
                for x in reversed(s):
                    if x.before>d: x.before=d; ch=True
                    d=x.before
                    for y in x.needs+x.ordr:
                        if y.idx is None and y.before is not None and y.before>x.before: y.before=x.before; ch=True
        for s in streams:
            for x in s:
                if x.soft and x.after>=x.before: x.after=max(x.hard,x.before-1)
                assert x.after<x.before, f"infeasible {x} after={x.after} before={x.before}"
        N=len(backbone)
        for n in range(N+1):
            mf=backbone[n] if n<N else None
            if n in self.hooks: self.hooks[n](self)
            b=budget if n>0 else 0
            o=self.off%4096
            if mf is not None and (4096-o<=self.pre or o<self.post): b=0
            if mf is not None:
                lg,vm=self.waits_safe(mf)
                if lg is not None or vm is not None:
                    if self.shadow and n>0 and self.ready_needs(mf): self.emit_wait(mf)
                    else: b-=4
            while True:
                cand=[]
                for k,s in enumerate(streams):
                    if pos[k]<len(s):
                        x=s[pos[k]]
                        if (x.after<n or mf is None) and self.ready_needs(x): cand.append((x.before,k,x))
                cand.sort(key=lambda c:(c[0]>n, min(c[0], c[2].after+soft[c[1]]) if soft and soft[c[1]] is not None else c[0], c[1]))
                pick=None
                if b>=8 and mf is not None and self.lead:
                    i0=next((i for i,c in enumerate(cand) if c[2].flex),None)
                    if i0 is not None:
                        fx=[c for c in cand if c[2].flex]
                        t8=[c for c in fx if c[2].cost==8 and c[0]-fx[0][0]<self.lead]
                        cand=cand[:i0]+t8+[c for c in cand[i0:] if c not in t8]
                if self.shadow and mf is not None and self.out[-1].kind=="mfma" and not any(c[0]<=n for c in cand):
                    sc=[c for c in cand if self.cost_of(c[2])<c[2].cost+(4 if any(v is not None for v in self.waits(c[2])) else 0)]
                    cand=sc+[c for c in cand if c not in sc]
                if self.memfirst and mf is not None:
                    ismem=lambda c: c[2].kind in LGKM or c[2].kind in VM
                    if self.out[-1].kind in VALU: cand=[c for c in cand if not ismem(c) or c[0]<=n]
                    else:
                        sh=[c for c in cand if c[2].kind in SCAL] if self.out[-1].kind=="mfma" else []
                        cand=sh+[c for c in cand if ismem(c)]+[c for c in cand if not ismem(c) and c not in sh]
                for bf,k,x in cand:
                    forced = bf<=n or mf is None
                    if forced: pick=(k,x); break
                    if mf is not None and 4096-self.off%4096>self.pre>=4096-(self.off+8)%4096 and False: continue
                    if self.cost_of(x)<=b and self.hazard(x)==0 and not self.young_dep(x): pick=(k,x); break
                if pick is None: break
                if mf is None:
                    for bf,k,x in cand:
                        if self.hazard(x)==0: pick=(k,x); break
                k,x=pick
                c=self.cost_of(x); b-=c
                self.emit(x); pos[k]+=1
            if b<0 and mf is not None and n>0 and not (4096-o<=self.pre or o<self.post):
                self.over+=-b; self.overlog.append((n,-b))
            if mf is not None:
                self.left.append(max(b,0) if not (4096-o<=self.pre or o<self.post) else -8); self.emit(mf)
        for k,s in enumerate(streams):
            assert pos[k]==len(s), f"stream {k} stuck at {s[pos[k]]} after={s[pos[k]].after}"
    def waits_safe(self, ins):
        if not self.ready_needs(ins): return 0,None
        return self.waits(ins)
    def text(self):
        return "\n".join("    "+x.text+(f"    ; {x.note}" if x.note else "") for x in self.out)

_REG=re.compile(r"\b([vas])(\d+)\b|\b([vas])\[(\d+):(\d+)\]|\b(m0|vcc|exec)\b")
def regs_in(s):
    o=[]
    for m in _REG.finditer(s):
        if m.group(1): o.append(m.group(1)+m.group(2))
        elif m.group(3): o+= [m.group(3)+str(k) for k in range(int(m.group(4)),int(m.group(5))+1)]
        else: o.append(m.group(6))
    return o
TRANS=("v_exp_f32","v_rcp_f32","v_log_f32","v_rsq_f32","v_sqrt_f32")
def A(text, **kw):
    op,_,rest=text.partition(" ")
    ops=[o.strip() for o in rest.split(",")]
    first=regs_in(ops[0]) if ops and ops[0] else []
    others=regs_in(",".join(ops[1:]))
    if op.startswith("v_mfma"):
        c=regs_in(ops[3]); return I(text,"mfma",rd=others,wr=first,srcc=c,**kw)
    if op.startswith("ds_read"): return I(text,"dsr",rd=others,wr=first,**kw)
    if op.startswith("ds_write"): return I(text,"dsw",rd=first+others,**kw)
    if op.startswith("buffer_load") or op.startswith("global_load"):
        if text.rstrip().endswith(" lds") or " lds " in text: return I(text,"dma",rd=first+others+["m0"],**kw)
        return I(text,"vld",rd=others,wr=first,**kw)
    if op.startswith("buffer_store") or op.startswith("global_store") or op.startswith("buffer_atomic") or op.startswith("global_atomic"):
        return I(text,"vst",rd=first+others,**kw)
    if op=="s_barrier": return I(text,"bar",**kw)
    if op=="s_nop": return I(text,"nop",cost=4*(int(rest)+1))
    if op.startswith("s_cmp") or op.startswith("s_bitcmp") or op.startswith("s_cbranch") or op.startswith("s_branch") or op.startswith("s_setprio") or op.startswith("s_waitcnt") or op.endswith(":"):
        return I(text,"salu",rd=first+others,**kw)
    if op.startswith("s_"): return I(text,"salu",rd=others,wr=first,**kw)
    if op.startswith("v_permlane"): return I(text,"perm",rd=first+others,wr=first+others,**kw)
    if "_dpp" in op: return I(text,"dpp",rd=others+first,wr=first,**kw)
    if op in TRANS: return I(text,"trans",rd=others,wr=first,**kw)
    if op.startswith("v_fmac"): return I(text,"valu",rd=others+first,wr=first,**kw)
    if op.startswith("v_"): return I(text,"valu",rd=others,wr=first,**kw)
    raise ValueError(text)

_INL=re.compile(r"^-?(\d+(\.\d+)?|0x[0-9a-fA-F]+)$")
def _is_lit(o):
    o=o.strip()
    if _INL.match(o):
        if "." in o: return float(o) not in (0.5,-0.5,1.0,-1.0,2.0,-2.0,4.0,-4.0)
        v=int(o,0)
        if v>=2**31: v-=2**32
        return not (-16<=v<=64)
    return o.startswith("L_") or o.startswith("CODE")
VOP3_ONLY=("v_fma_f32","v_cvt_pk_bf16_f32","v_lshl_add_u32","v_add3_u32","v_bfe_u32","v_mad_u32_u24","v_mbcnt","v_accvgpr","v_mfma","v_pk_","v_and_or","v_perm_b32","v_lshl_or","v_mul_lo","v_med3","v_bfi")
def isize(text):
    n=0
    for t in text.split("\n"):
        t=t.strip()
        if not t or t.endswith(":"): continue
        op,_,rest=t.partition(" "); ops=[o.strip() for o in rest.split(",")]
        if op.startswith(("ds_","buffer_","global_","s_load","s_memtime","s_memrealtime")): n+=8
        elif op.startswith(("s_waitcnt","s_barrier","s_nop","s_cbranch","s_branch","s_endpgm","s_setprio")): n+=4
        elif op.startswith("s_"): n+=8 if any(_is_lit(o) for o in ops[1:] if o) or (op.startswith("s_cmp") and _is_lit(ops[0])) else 4
        elif op.startswith(VOP3_ONLY) or "_dpp" in op or " clamp" in t: n+=8
        elif op.startswith("v_"):
            vop3 = any(o.startswith("-") and not _INL.match(o) for o in ops) or (len(ops)>2 and not op.startswith("v_cndmask") and not ops[2].split()[0].startswith("v"))
            n+=8 if vop3 or any(_is_lit(o.split()[0]) for o in ops[1:]) else 4
        else: raise ValueError(t)
    return n
```

```python
import sys, os
sys.path.insert(0, os.path.dirname(__file__))
from common import *
K=1024
DEF=dict(diag=0, dset=0, d0=0, dstep=32, prof=0, dstart=0, verbose=0, kill=0,
  stm=2, stm0=1, nst0=0, xnt=1, ppre=32, ppost=0, lead=60, nep=2, vdone=1600,
  mq0=2, mp0=1, mq=1, mp=1, mq3=1, mp3=0, g0=6, g1=9, g2=12, gt=14, xring=2,
  npre=4, e0q=35, e0l=60, shadow=1, atC=6, shl=2, quietl=40, landl=50, dsp0=45, dsp=50, wr_lead=32,
  oo0=4, oo1=4, oo2=1, atD=4, atE=0, pd=6, pw=4, quietc=90, landc=110, xsp=3, bE=16, bM=18,
  xgap=30, xn=2, x2at=0, x3at=35, xn3=10, q2=100, q3=120, sh3=0, lsp1=50, lsp=55, ckd=50, s3at=0, lneed=60, pcut=12, wchk=2, cslack=30, p3at=40, hla=2, hsq=2, tmall=0)
def STG(): return (4,6,0,2) if pcut<12 else ((6,0,2,4) if pcut<16 else (0,2,4,6))
def helper(RAW0,WSN,diag):
    H=Sched(); H.shadow=False
    E=lambda t,**k: (lambda i:(H.emit(i),i)[1])(A(t,**k))
    def EM(txt):
        for t in txt.strip().split("\n"): E(t.strip())
    EM("""s_sub_u32 s24, s24, 126
    s_lshl_b32 s24, s24, 1
    s_add_u32 s24, s24, s26
    v_and_b32 v1, 63, v0
    v_lshrrev_b32 v2, 6, v0
    s_nop 0
    v_readfirstlane_b32 s30, v2
    v_lshrrev_b32 v3, 3, v1
    v_and_b32 v4, 2, v3
    v_xor_b32 v4, v4, v1
    v_and_b32 v4, 7, v4
    v_lshlrev_b32 v4, 4, v4
    v_lshl_add_u32 v4, v3, 10, v4
    v_xor_b32 v5, 64, v4
    s_lshl_b32 s24, s24, 2
    s_add_u32 s24, s24, s30
    s_and_b32 s25, s24, 7
    s_lshr_b32 s26, s24, 3
    s_mul_i32 s27, s30, 40960
    v_lshrrev_b32 v6, 4, v1
    v_bfe_u32 v7, v1, 2, 2
    v_lshl_add_u32 v8, v6, 3, v7
    v_lshlrev_b32 v8, 7, v8
    v_and_b32 v9, 2, v7
    v_and_b32 v10, 1, v6
    v_lshl_add_u32 v9, v10, 2, v9
    v_lshl_add_u32 v8, v9, 4, v8
    v_and_b32 v9, 3, v1
    v_lshl_add_u32 v8, v9, 3, v8
    v_add_u32 v10, s27, v8
    v_xor_b32 v11, 32, v10
    v_xor_b32 v12, 64, v10
    v_xor_b32 v13, 0x60, v10
    v_lshlrev_b32 v14, 4, v1
    s_bfe_u32 s28, s25, 0x10001
    s_lshl_b32 s28, s28, 14
    s_and_b32 s29, s25, 1
    s_lshl_b32 s29, s29, 13
    s_add_u32 s28, s28, s29
    s_lshr_b32 s29, s25, 2
    s_lshl_b32 s29, s29, 11
    s_add_u32 s28, s28, s29
    v_add_u32 v14, s28, v14
    v_add_u32 v15, 4096, v14
    s_cmp_lt_u32 s25, 4
    s_mov_b32 s35, 0xbfb8aa3b
    s_cselect_b32 s35, 0x4038aa3b, s35
    s_mov_b32 s34, 0xffff0000
    s_lshl_b32 s25, s25, 7
    s_lshl_b32 s31, s26, 15
    s_add_u32 s25, s25, s31
    v_or_b32 v16, s30, v1
    v_mov_b32 v17, 0
    v_cmp_ne_u32 vcc, 0, v16
    v_mov_b32 v16, 0x40000000
    v_mov_b32 v18, 1
    v_cndmask_b32 v17, v17, v16, vcc""")
    H.emit(I("s_waitcnt lgkmcnt(0)","wait"))
    EM(f"""s_mov_b32 s16, s6
    s_mov_b32 s17, s7
    s_mov_b32 s18, 1310720
    s_mov_b32 s19, 0x20000
    s_mov_b32 s48, s10
    s_mov_b32 s49, s11
    s_mov_b32 s50, 256
    s_mov_b32 s51, 0x20000
    s_mov_b32 s46, {WSN}
    s_mov_b32 s47, 0x20000""")
    DS0=STG(); NB=5
    units=[(st,t) for st in range(4) for t in (1,2,0)]
    taps=lambda t: (2*t-1,2*t) if t else (0,)
    def raw(st,i): return 4*(DS0[st]//2)+(0 if i%2 else 2)+1>=pcut
    D={}
    def dma(u):
        st,t=units[u]; D[u]=[]
        for n,i in enumerate(taps(t)):
            for p in range(4):
                E(f"s_add_u32 m0, s27, {(u%NB)*8192+n*4096+p*1024}"); E(f"s_add_u32 s38, s25, {i*262144+DS0[st]*32768+p*8192}")
                D[u].append(E(f"buffer_load_dwordx4 v{4+p%2}, s[16:19], s38 offen lds"))
    for u in range(hla): dma(u)
    if diag: H.emit(I(f"s_memrealtime s[62:63]\n    s_memrealtime s[64:65]","salu"))
    E(f"s_mul_i32 s39, s26, 163840"); E(f"s_mul_i32 s40, s26, 98304")
    sig=None
    for u,(st,t) in enumerate(units):
        fr=lambda n,q: 32+32*(u%2)+16*n+4*q
        for n,i in enumerate(taps(t)):
            for q in range(4):
                for h in range(2):
                    E(f"ds_read_b64_tr_b16 v[{fr(n,q)+2*h}:{fr(n,q)+2*h+1}], v{10+q} offset:{(u%NB)*8192+n*4096+h*512}",needs=D[u][4*n:4*n+4])
        if u+hla<len(units): dma(u+hla)
        sts=[]
        for n,i in enumerate(taps(t)):
            if raw(st,i):
                E(f"s_add_u32 s41, s39, {RAW0+(DS0[st]-4)*163840+i*32768}")
                for q in range(4): sts.append(E(f"buffer_store_dwordx4 v[{fr(n,q)}:{fr(n,q)+3}], v{14+q//2}, s[44:47], s41 offen offset:{(q%2)*1024} sc1"))
        E(f"s_add_u32 s41, s40, {DS0[st]*98304+t*32768}")
        for q in range(4):
            o=112+4*q
            for w in range(4):
                a=fr(0,q)+w
                E(f"v_lshlrev_b32 v20, 16, v{a}"); E(f"v_and_b32 v21, s34, v{a}")
                if t:
                    b=fr(1,q)+w
                    E(f"v_lshlrev_b32 v22, 16, v{b}"); E(f"v_and_b32 v23, s34, v{b}"); E("v_add_f32 v20, v20, v22"); E("v_add_f32 v21, v21, v23")
                E("v_mul_f32 v20, s35, v20"); E("v_mul_f32 v21, s35, v21"); E(f"v_cvt_pk_bf16_f32 v{o+w}, v20, v21")
            if q==hsq and sig:
                s0,last=sig; sig=None
                E("s_barrier",needs=[last]); E(f"buffer_atomic_add v18, v17, s[48:51], 0 offen offset:{4*s0}")
                if diag: H.emit(I(f"s_memrealtime s[{66+2*s0}:{67+2*s0}]","salu"))
            sts.append(E(f"buffer_store_dwordx4 v[{o}:{o+3}], v{14+q//2}, s[44:47], s41 offen offset:{(q%2)*1024} sc1"))
        if t==0: sig=(st,sts[-1])
    s0,last=sig
    E("s_barrier",needs=[last]); E(f"buffer_atomic_add v18, v17, s[48:51], 0 offen offset:{4*s0}")
    if diag: H.emit(I(f"s_memrealtime s[72:73]","salu"))
    if diag:
        EM("""s_waitcnt lgkmcnt(0)
        s_mov_b32 s46, 0x2000000
        s_lshl_b32 s3, s2, 2
        s_add_u32 s3, s3, s30
        s_lshl_b32 s3, s3, 7
        s_add_u32 s3, s3, 0x1000000
        v_mov_b32 v2, s3
        s_mov_b64 exec, 1""")
        for k in range(16):
            E(f"v_mov_b32 v3, s{60+k}"); E(f"buffer_store_dword v3, v2, s[44:47], 0 offen offset:{4*k}"); E("s_nop 1")
    return "L_helper:\n"+H.text()

def gen(**kw):
    o_=dict(DEF); assert not set(kw)-set(o_), set(kw)-set(o_); o_.update(kw); globals().update(o_)
    STRIDE=254; NT=" nt" if xnt else ""
    S=Sched()
    E=lambda t,**k: (lambda i:(S.emit(i),i)[1])(A(t,**k))
    def EM(txt):
        for t in txt.strip().split("\n"): E(t.strip())
    vXr,vS,vP2,vSt,vK=0,2,3,4,5
    TA,TB,T0,T1=6,10,14,15
    vXa,vXb,vW,vWr=16,17,18,20
    vRs,vRr,vFl,vOne,vTw=22,23,24,25,26
    vL,vWv,vG,vU0,vU1=27,28,29,30,31
    RP=28
    vK2=T1
    BLK=16
    def Pacc(j,c): return ("v",32+16*j+4*c)
    def Qacc(j,c): return ("v",160+16*j+4*c) if j<6 else ("a",16*(j-6)+4*c)
    def Qhome(j,c): return BLK+4*c if j==8 else 160+16*(j if j<6 else j-6)+4*c
    WQ,WP,SP,RING,NR=32,96,192,208,12
    sX,sW,sO,sWs,sD=12,16,20,44,48
    sC1,sC2,sKh,sMask,sSc=31,32,33,34,35
    sWb,sXb,sT,sRA,sRB,sRO,sRL,sT2=36,37,38,39,40,41,42,43
    sSt=[52,53,54]; sOA,sOB=24,25
    OREG=[0,20*K,80*K,100*K]; EREG=[40*K,60*K,40*K,60*K]; WIN=[0,20*K,40*K,60*K]; SREG=OREG[:3]+[EREG[2]]; SWIN=[0,20*K,40*K,40*K]
    UNITS=[100*K,108*K]+[120*K+8*K*u for u in range(5)]; WB0=100*K
    npk=4; RAW0=786432; WSN=RAW0+(8-npk)*163840; OOB="0x40000000"
    stamps=[0]
    def stamp(emit=True,**k):
        if not diag: return None
        n=stamps[0]; stamps[0]+=1
        i=I(f"s_memrealtime s[{60+2*n}:{61+2*n}]\n    s_memtime s[{76+2*n}:{77+2*n}]","salu",cost=8,**k)
        if emit: S.emit(i)
        return i
    stamp()
    EM(f"""s_load_dwordx4 s[4:7], s[0:1], 0
    s_load_dwordx4 s[8:11], s[0:1], 16
    s_load_dwordx2 s[{sWs}:{sWs+1}], s[0:1], 32
    s_cmp_ge_u32 s2, 256
    s_cbranch_scc1 L_exit
    s_lshr_b32 s24, s2, 4
    s_and_b32 s25, s2, 7
    s_lshl_b32 s24, s24, 3
    s_add_u32 s24, s24, s25
    s_bfe_u32 s26, s2, 0x10003
    s_cmp_ge_u32 s24, 126
    s_cbranch_scc1 L_helper
    s_cmp_ge_u32 s24, 63
    s_cselect_b32 s27, 63, 0
    s_cselect_b32 s28, 8192000, 0
    s_sub_u32 s24, s24, s27
    s_mul_i32 s29, s24, {STRIDE*512}
    s_lshl_b32 s26, s26, 8
    v_and_b32 v{vL}, 63, v0
    v_lshrrev_b32 v{vWv}, 6, v0
    v_lshrrev_b32 v{vG}, 4, v{vL}
    v_readfirstlane_b32 s30, v{vWv}
    v_lshrrev_b32 v{vU0}, 5, v{vL}
    v_lshlrev_b32 v{vU0}, 14, v{vU0}
    v_bfe_u32 v{vU1}, v{vL}, 3, 1
    v_lshl_add_u32 v{vU0}, v{vU1}, 13, v{vU0}
    v_bfe_u32 v{vU1}, v{vL}, 4, 1
    v_lshl_add_u32 v{vU0}, v{vU1}, 12, v{vU0}
    v_bfe_u32 v{vU1}, v{vL}, 2, 1
    v_lshl_add_u32 v{vU0}, v{vU1}, 11, v{vU0}
    v_and_b32 v{vU1}, 3, v{vL}
    v_lshl_add_u32 v{vU0}, v{vU1}, 4, v{vU0}
    v_lshl_add_u32 v{vU0}, v{vWv}, 6, v{vU0}
    v_add_u32 v{vW}, s26, v{vU0}
    v_xor_b32 v{vW+1}, 32, v{vW}
    v_and_b32 v{vU0}, 1, v{vWv}
    v_lshl_add_u32 v{vU0}, v{vU0}, 2, v{vG}
    v_xor_b32 v{vU1}, v{vU0}, v{vL}
    v_and_b32 v{vU1}, 7, v{vU1}
    v_lshlrev_b32 v{vU1}, 4, v{vU1}
    v_lshl_add_u32 v{vU1}, v{vU0}, 14, v{vU1}
    v_bfe_u32 v{vU0}, v{vL}, 3, 1
    v_lshl_add_u32 v{vU1}, v{vU0}, 9, v{vU1}
    v_lshrrev_b32 v{vU0}, 1, v{vWv}
    v_mul_u32_u24 v{vU0}, 10240, v{vU0}
    v_add3_u32 v{vXb}, v{vU0}, v{vU1}, s29
    v_add_u32 v{vXa}, 0xfffff000, v{vXb}
    s_lshl_b32 s{sWb}, s30, 11
    s_lshr_b32 s{sXb}, s30, 1
    s_mul_i32 s{sXb}, s{sXb}, 10240
    s_and_b32 s{sT}, s30, 1
    s_lshl_b32 s{sT}, s{sT}, 10
    s_add_u32 s{sXb}, s{sXb}, s{sT}""")
    S.emit(I("s_waitcnt lgkmcnt(0)","wait"))
    if dstart: stamp()
    EM(f"""s_mov_b32 s{sW}, s6
    s_mov_b32 s{sW+1}, s7
    s_mov_b32 s{sW+2}, 1310720
    s_mov_b32 s{sW+3}, 0x20000
    s_add_u32 s{sX}, s4, s28
    s_addc_u32 s{sX+1}, s5, 0
    s_mov_b32 s{sX+2}, 8192000
    s_mov_b32 s{sX+3}, 0x20000""")
    wdma={}; xdma={}; wunit={}
    def mk_wdma(key,base):
        ds,i,fg=key
        g=[A(f"s_add_u32 m0, s{sWb}, {base}"), A(f"s_mov_b32 s{sT}, {i*262144+ds*32768+fg*512}")]
        d=[A(f"buffer_load_dwordx4 v{vW+p}, s[{sW}:{sW+3}], s{sT} offen offset:{p*1024} lds") for p in range(2)]
        wdma[key]=d; wunit[key]=base; return g+d
    def mk_xdma(k,cls):
        reg=(OREG if cls else EREG)[k]; so=cls*1024+k*128
        o=[];d=[]
        for m in range(5):
            if m%2==0: o.append(A(f"s_add_u32 m0, s{sXb}, {reg+m*2048}"))
            if m in (0,4): o.append(A(f"s_mov_b32 s{sT}, {so+(4096 if m==4 else 0)}"))
            x=A(f"buffer_load_dwordx4 v{vXa if m<2 else vXb}, s[{sX}:{sX+3}], s{sT} offen offset:{(m%2)*2048}{NT} lds"); o.append(x); d.append(x)
        xdma[(k,cls)]=d; return o
    def pmode(kind,k):
        if kind=="Q": return mq0 if k==0 else (mq3 if k==3 else mq)
        return mp0 if k==0 else (mp3 if k==3 else mp)
    horder=[]
    def pidx(ds,i): return 4*(ds//2)+(0 if i%2 else 2)+ds%2
    for k in range(4):
        for kind,taps in (("Q",(1,3)),("P",(0,2,4))):
            m=pmode(kind,k)
            if m==2: horder+= [(2*k+e,i,fg) for e in range(2) for i in taps for fg in range(2)]
            elif m==1: horder+= [(2*k+e,i,fg) for e in range(2) for fg in range(2) for i in taps]
            else:  horder+= [(2*k+e,i,fg) for fg in range(2) for e in range(2) for i in taps]
    horder=[h for h in horder if pidx(h[0],h[1])<pcut]
    prevocc={}; wgroups={}; q=[(u,None) for u in UNITS]
    for n,h in enumerate(horder):
        while True:
            u,ph=q.pop(0)
            if not (u<120*K and n>=44): break
        prevocc[h]=ph; q.append((u,h)); wgroups[h]=mk_wdma(h,u)
    xg={(k,cls):mk_xdma(k,cls) for k in range(4) for cls in (1,0)}
    for h in horder[:2]:
        for x in wgroups[h]: S.emit(x)
    for x in xg[(0,1)]: S.emit(x)
    if dstart: stamp()
    EM(f"""s_getpc_b64 s[56:57]
    s_lshr_b32 s58, s2, 3
    s_lshl_b32 s58, s58, 2
    s_add_u32 s58, s58, s30
    s_lshl_b32 s59, s58, 9
    v_min_u32 v{vU0}, 3, v{vL}
    v_lshlrev_b32 v{vU0}, 7, v{vU0}
    v_add_u32 v{vU0}, s59, v{vU0}
    s_mov_b32 s59, CODE_LEFT
    v_min_u32 v{vU0}, s59, v{vU0}
    global_load_dword a{SP}, v{vU0}, s[56:57]
    s_mul_i32 s58, s58, 20
    v_min_u32 v{vTw}, 19, v{vL}
    v_add_u32 v{vTw}, s58, v{vTw}
    v_lshrrev_b32 v{vU1}, 9, v{vTw}
    v_mul_u32_u24 v{vU1}, 1536, v{vU1}
    v_add_u32 v{vTw}, v{vTw}, v{vU1}
    v_lshlrev_b32 v{vTw}, 7, v{vTw}
    s_mov_b32 s55, 65536
    buffer_load_dword a{SP+1}, v{vTw}, s[{sW}:{sW+3}], 0 offen""")
    if tmall:
        EM(f"""s_lshl_b32 s58, s2, 2
        s_add_u32 s58, s58, s30
        s_mul_i32 s58, s58, 5
        v_min_u32 v{vU0}, 4, v{vL}
        v_add_u32 v{vU0}, s58, v{vU0}
        v_lshrrev_b32 v{vU1}, 10, v{vU0}
        v_lshlrev_b32 v{vU1}, 10, v{vU1}
        v_add_u32 v{vU0}, v{vU0}, v{vU1}
        v_lshlrev_b32 v{vU0}, 7, v{vU0}
        s_mov_b32 s58, 131072
        buffer_load_dword a{SP+3}, v{vU0}, s[{sW}:{sW+3}], s58 offen""")
    EM("s_mov_b32 s24, 131072\ns_mov_b32 s25, 196608")
    tC,tD,tE=[A(f"buffer_load_dword a{SP+2}, v{vTw}, s[{sW}:{sW+3}], s{r} offen") for r in (55,24,25)]
    EM(f"""v_and_b32 v{vU0}, 15, v{vL}
    v_lshrrev_b32 v{vU1}, 1, v{vU0}
    v_xor_b32 v{T0}, v{vU1}, v{vG}
    v_lshlrev_b32 v{T0}, 4, v{T0}
    v_and_b32 v{T1}, 7, v{vL}
    v_lshl_add_u32 v{T0}, v{T1}, 7, v{T0}
    v_bfe_u32 v{T1}, v{vL}, 3, 1
    v_lshl_add_u32 v{vXr}, v{T1}, 10, v{T0}
    v_xor_b32 v{vXr+1}, 64, v{vXr}
    v_lshlrev_b32 v{T0}, 4, v{vL}
    v_add_u32 v{vS}, s{sXb}, v{T0}
    s_lshl_b32 s58, s26, 6
    s_lshl_b32 s59, s30, 12
    s_add_u32 s58, s58, s59
    v_add_u32 v{vP2}, s58, v{T0}
    v_and_b32 v{T0}, 1, v{vU0}
    v_lshl_add_u32 v{T0}, v{vU1}, 5, v{T0}
    v_lshlrev_b32 v{T0}, 9, v{T0}
    v_and_b32 v{T1}, 1, v{vG}
    v_lshl_add_u32 v{T0}, v{T1}, 5, v{T0}
    v_lshrrev_b32 v{T1}, 1, v{vG}
    v_lshl_add_u32 v{T0}, v{T1}, 4, v{T0}
    v_lshl_add_u32 v{T0}, v{vWv}, 6, v{T0}
    s_add_u32 s29, s29, s26
    v_add_u32 v{vSt}, s29, v{T0}
    v_bfe_u32 v{T0}, v{vL}, 2, 1
    v_lshlrev_b32 v{T1}, 10, v{T0}
    v_lshl_add_u32 v{T1}, v{T0}, 5, v{T1}
    v_lshrrev_b32 v{T0}, 5, v{vL}
    v_lshl_add_u32 v{T1}, v{T0}, 9, v{T1}
    v_bfe_u32 v{T0}, v{vL}, 4, 1
    v_lshl_add_u32 v{T1}, v{T0}, 7, v{T1}
    v_bfe_u32 v{T0}, v{vL}, 3, 1
    v_lshl_add_u32 v{T1}, v{T0}, 6, v{T1}
    v_and_b32 v{T0}, 3, v{vL}
    v_lshl_add_u32 v{T1}, v{T0}, 3, v{T1}
    s_add_u32 s58, s{sWb}, {WB0}
    v_add_u32 v{vWr}, s58, v{T1}
    v_xor_b32 v{vWr+1}, 32, v{vWr}
    v_mov_b32 v{vK}, 0xc1800000
    s_add_u32 s{sO}, s8, s28
    s_addc_u32 s{sO+1}, s9, 0
    s_mov_b32 s{sO+2}, 8192000
    s_mov_b32 s{sO+3}, 0x20000
    s_mov_b32 s{sD}, s10
    s_mov_b32 s{sD+1}, s11
    s_mov_b32 s{sD+2}, 256
    s_mov_b32 s{sD+3}, 0x20000
    s_mov_b32 s{sWs+2}, {WSN}
    s_mov_b32 s{sWs+3}, 0x20000
    s_mov_b32 s{sC1}, 0xc038aa3b
    s_mov_b32 s{sC2}, 0xbfb8aa3b
    s_mov_b32 s{sKh}, 0x47000000
    s_mov_b32 s{sMask}, 0xffff0000
    s_mov_b32 s{sSt[0]}, 4096
    s_mov_b32 s{sSt[1]}, 8192
    s_mov_b32 s{sSt[2]}, 12288""")
    br=I("s_branch L_main","salu"); S.emit(br); br.text+="\n.p2align 12\nL_main:"; S.off=0; S.pre=ppre; S.post=ppost
    for h in horder[2:npre]:
        for x in wgroups[h]: S.emit(x)
    for x in xg[(0,0)]: S.emit(x)
    if dstart: stamp()
    bb=[]; mark={}
    def part(kind,k):
        taps=(1,3) if kind=="Q" else (0,2,4); cls=1 if kind=="Q" else 0; m=pmode(kind,k)
        if m==2:
            for e in range(2):
                for i in taps:
                    for j in range(8):
                        for c in range(4): bb.append(((kind,j,c),("w",2*k+e,i,c),(k,cls,j+i//2,e,i)))
        else:
            fl=0
            for es in ([(0,),(1,)] if m==1 else [(0,1)]):
                for j in range(8):
                    cs=[0,1,2,3]
                    if j%2 and j!=7: cs=cs[::-1]
                    for c in cs:
                        seq=[(e,i) for e in es for i in (taps if e==es[0] else taps[::-1])]
                        if fl: seq=seq[::-1]
                        fl^=1
                        for e,i in seq: bb.append(((kind,j,c),("w",2*k+e,i,c),(k,cls,j+i//2,e,0)))
    for k in range(4):
        mark[("Q",k)]=len(bb); part("Q",k)
        mark[("P",k)]=len(bb); part("P",k)
    mark["R"]=len(bb)
    prods=[(ds,t) for ds in range(8) for t in range(3)]
    cuts=[0,g0,g1,g2,gt,24]
    for gi,gk in enumerate((0,2,3,4,5)):
        g=prods[cuts[gi]:cuts[gi+1]]; dss=sorted({p[0] for p in g})
        mark[("R",gk)]=len(bb); fl=0
        for j in range(8):
            cs=[0,2,1,3]
            if gi<4 and j%2 and j!=7: cs=cs[::-1]
            if j==0 and len(dss)>1:
                for ds in dss:
                    for c in cs:
                        for d2,t in g:
                            if d2==ds: bb.append((("P",j,c),("r",ds,t,c),(ds//2,2,j+t,ds%2,gi)))
                continue
            for c in cs:
                seq=[]
                for n,ds in enumerate(dss):
                    q_=[p for p in g if p[0]==ds]; seq+= q_ if n%2==0 else q_[::-1]
                if fl: seq=seq[::-1]
                fl^=1
                for ds,t in seq: bb.append((("P",j,c),("r",ds,t,c),(ds//2,2,j+t,ds%2,gi)))
    N=len(bb); assert N==2048
    first={}; last={}; last1={}; first2={}
    for n,(a,w,x) in enumerate(bb):
        for key in (a,w,("x",x)):
            first.setdefault(key,n); last[key]=n
        if n<mark["R"]: last1[a]=n
        else: first2.setdefault(a,n)
    endP=lambda k: mark[("Q",k+1)] if k<3 else mark["R"]
    bar0=A("s_barrier",needs=xdma[(0,1)])
    barM={k:A("s_barrier",needs=list(xdma[(k,0)]),after=mark[("P",k)]-bM,before=mark[("P",k)]-bM+6) for k in range(4)}
    barE={k:A("s_barrier",needs=list(xdma[(k+1,1)]),after=endP(k)-bE,before=endP(k)-bE+6) for k in range(3)}
    barS=A("s_barrier",after=mark[("R",5)]-60,before=mark[("R",5)]-40)
    def rebase(d,**k): return [A(f"v_add_u32 v{r}, {d&0xffffffff:#x}, v{r}",**k) for r in (vXr,vXr+1)]
    reb={k+1:rebase(20*K,needs=[barE[k]]) for k in range(3)}; reb[4]=rebase(-60*K); reb[5]=rebase(40*K)
    xorder=sorted({b[2] for b in bb}, key=lambda x:first[("x",x)])
    slots=[(-1,RING+4*s) for s in range(NR)]+[(mark[('R',3)],RING-4-4*s) for s in range(xring)]
    xslot={}; xread={}; st_xr=[]; curwin=0
    for x in xorder:
        k,cls,a,e,_=x
        slots.sort(); aft,reg=slots.pop(0); slots.append((last[("x",x)],reg)); xslot[x]=reg
        f=first[("x",x)]
        if cls<2: win=k; base=(OREG if cls else EREG)[k]-WIN[k]; nd=[(bar0 if k==0 else barE[k-1]) if cls else barM[k]]
        else: win=4 if k<2 else 5; base=SREG[k]-(0 if k<2 else 40*K); nd=[barM[3]] if k<3 else [barS]
        if win!=curwin:
            for r in reb[win]: r.after=max(aft,f-40)-1; st_xr.append(r)
            curwin=win
        ins=A(f"ds_read_b128 a[{reg}:{reg+3}], v{vXr+e} offset:{base+a*2048}", needs=nd, after=max(aft,f-40), before=max(f-9,aft+1))
        xread[x]=ins; st_xr.append(ins)
    for k in range(4): barM[k].needs.append([xread[x] for x in xorder if x[0]==k and x[1]==1][-1])
    barE[2].needs.append([xread[x] for x in xorder if x[0]==2 and x[1]==0][-1])
    def wreg(ds,i,c):
        e=ds%2
        return (WQ+32*e+16*(i//2)+4*c) if i%2 else (WP+48*e+16*(i//2)+4*c)
    wread={}; st_wr=[]; prevw={}; hreads={}
    for h in horder:
        ds,i,fg=h
        for cp in range(2):
            c=2*fg+cp; reg=wreg(ds,i,c); key=("w",ds,i,c)
            aft=prevw.get(reg,-1); prevw[reg]=last[key]
            for hh in range(2):
                ins=A(f"ds_read_b64_tr_b16 a[{reg+2*hh}:{reg+2*hh+1}], v{vWr+cp} offset:{wunit[h]-WB0+hh*256}", needs=wdma[h], after=aft, before=max(first[key]-9,aft+1))
                ins.soft=True; ins.hard=aft
                wread.setdefault(key,[]).append(ins); hreads.setdefault(h,[]).append(ins); st_wr.append(ins)
    st_vm=[]; tl=[-4]
    def put(lst,t,sp=5):
        for x in lst:
            if x.kind in VM: tl[0]=max(t,tl[0]+sp); x.after=int(tl[0])
            else: x.after=int(max(t-1,tl[0]+sp-2))
            x.soft=True; st_vm.append(x)
        return int(tl[0])
    vPv=T1+0
    def mkpoll(st,reg): return A(f"buffer_load_dword a{reg}, off, s[{sD}:{sD+3}], 0 offset:{4*st} sc1")
    polls=[mkpoll(st,SP+12+st) for st in range(4)]
    stage=lambda ds: STG().index(ds&~1)
    vK2=T1; chks={}
    def mkchk(st,t):
        return [A(f"v_accvgpr_read_b32 v{vK2}, a{SP+12+st}",after=t,needs=[polls[st]]),A(f"v_cmp_gt_u32 vcc, 4, v{vK2}",after=t),A("s_nop 0"),A("s_nop 0"),
                I(f"s_cbranch_vccnz L_spin{st}\nL_back{st}:","salu",rd=["vcc"],after=t,before=t+cslack)]
    items=list(horder)
    wk=sorted({b[1][1:3] for b in bb if b[1][0]=="w" and pidx(*b[1][1:3])>=pcut},key=lambda w:min(first[("w",)+w+(c,)] for c in range(4)))
    items+=wk
    lastof=lambda ds,odd: max(n for n,h in enumerate(items) if h[0]==ds and h[1]%2==odd)+1
    epi={lastof(2*k+1,0)+(oo0,oo1,oo2)[k]:k+1 for k in range(3)}
    lone={npre+atC:tC}
    if pcut>8: lone[lastof(2,0)+atD]=tD
    if pcut>12: lone[lastof(4,0)+atE]=tE
    pollat={}
    for n,h in enumerate(items):
        if len(h)==2 and stage(h[0]) not in pollat.values(): pollat[n-pd]=stage(h[0])
    pollat[len(items)-pw]=3 if wchk==1 else stage(0)
    for k in (2,3): xg[(k,0)][2].needs.append(barM[k-1])
    xg[(3,1)][2].needs.append(barM[2])
    rdt={h:-1 for h in horder[:npre]}
    notbefore=e0l; resume=e0q; nsh=shadow
    for n,h in enumerate(items):
        if n<npre: continue
        sp=(dsp0 if h[0]<2 else dsp)/10
        if n in pollat:
            st=pollat[n]; tp=put([polls[st]],resume if n not in epi else 0,3); chks[st]=mkchk(st,max(tp+ckd,notbefore))
        if n in epi:
            k=epi[n]; t0=tl[0]+sp
            if k>1: t0=max(t0,barM[k-1].before+1)
            put(xg[(k,1)]+xg[(k,0)],t0,xsp)
            resume=t0+quietc; notbefore=t0+landc; nsh=0
            if verbose: print("episode",k,t0,file=sys.stderr)
        if n in lone:
            t0=put([lone[n]],resume if nsh==0 else 0,3)
            if nsh==0: nsh=shl; resume=t0+quietl
            notbefore=max(notbefore,t0+landl)
        if len(h)==2:
            ds,i=h; g=[A(f"s_mov_b32 s{sT2}, {RAW0+(ds-npk)*163840+i*32768}")]
            for c in sorted(range(4),key=lambda c:first[("w",ds,i,c)]):
                w=("w",ds,i,c); reg=wreg(ds,i,c); aft=prevw[reg]; prevw[reg]=last[w]
                ld=A(f"buffer_load_dwordx4 a[{reg}:{reg+3}], v{vP2}, s[{sWs}:{sWs+3}], s{sT2} offen offset:{c*1024} sc1",ordr=[chks[stage(ds)][-1]]); ld.hard=aft
                t=put(g+[ld],max(aft,resume,chks[stage(ds)][0].after+6),lsp1/10); g=[]
                ld.before=max(first[w]-4,aft+1); wread[w]=[ld]
                if verbose and first[w]-t<lneed: print(w,"ld",t,"need",first[w],"LATE",file=sys.stderr)
            continue
        ph=prevocc[h]
        t=-1 if ph is None else rdt[ph]+8
        if nsh>0: nsh-=1
        else: t=max(t,resume)
        if ph is not None: wgroups[h][2].needs+=hreads[ph]
        t=put(wgroups[h],t,sp)
        dl=min(x.before for x in hreads[h])
        if t>dl-14:
            for x in wgroups[h]: x.before=dl-13
            tl[0]=t=dl-14
        r=min(max(t+wr_lead,max(x.after for x in hreads[h]),notbefore,max(rdt.values())),dl-3)
        for x in hreads[h]: x.after=max(x.after,min(r,dl-1))
        rdt[h]=r+2; lastW=wgroups[h][-1]
        if verbose>1: print(h,"dma",t,"read",r,"need",min(first[("w",h[0],h[1],2*h[2]+cp)] for cp in range(2)),file=sys.stderr)
    lastX=xdma[(3,0)][-1]; tdone=max(rdt.values())
    st_s=[]
    swr={}; sidx={}
    for k in range(4):
        t0=mark[("P",k)]+4 if k<3 else mark[("Q",3)]+s3at
        for m in range(5):
            sidx[(k,m)]=len(st_s)
            if k in (1,2) and m==0: st_s.append(A(f"v_add_u32 v{vS}, {20*K}, v{vS}",after=t0-4))
            if k==3 and m in (2,4):
                st_s.append(A(f"v_add_u32 v{vS}, 4096, v{vS}",after=t0)); SWIN[3]+=4096
            st_s.append(A(f"ds_read_b128 v[{TA}:{TA+3}], v{vS} offset:{EREG[k]-SWIN[k]+m*2048}",needs=[barM[k]] if k<3 else [barE[2],xdma[(3,0)][m]],after=t0))
            st_s.append(A(f"ds_read_b128 v[{TB}:{TB+3}], v{vS} offset:{OREG[k]-SWIN[k]+m*2048}",after=t0))
            for q in range(4):
                a,b=TA+q,TB+q
                st_s+=[A(t,after=t0) for t in (f"v_lshlrev_b32 v{T0}, 16, v{a}",f"v_lshlrev_b32 v{T1}, 16, v{b}",f"v_and_b32 v{a}, s{sMask}, v{a}",f"v_and_b32 v{b}, s{sMask}, v{b}",
                   f"v_add_f32 v{T0}, v{T0}, v{T1}",f"v_add_f32 v{a}, v{a}, v{b}",f"v_cvt_pk_bf16_f32 v{a}, v{T0}, v{a}")]
            w=A(f"ds_write_b128 v{vS}, v[{TA}:{TA+3}] offset:{SREG[k]-SWIN[k]+m*2048}",after=t0,cost=8); st_s.append(w); swr[(k,m)]=w
        (barM[k+1] if k<3 else barS).needs.append(swr[(k,4)])
    st_tr=[]; qread={}
    def cq(j,nd=()):
        o=[]
        for c in range(4):
            kind,src=Qacc(j,c); h=Qhome(j,c)
            for q in range(4):
                if kind=="a":
                    x=A(f"v_accvgpr_read_b32 v{h+q}, a{src+q}",ordr=list(nd)); o.append(x); qread[src+q]=x
            for q in range(4):
                o.append(A(f"v_fma_f32 v{h+q}, s{sC1}, v{h+q}, v{vK}" if c<2 else f"v_mul_f32 v{h+q}, s{sC2}, v{h+q}",after=last1[("Q",j,c)]+3))
        return o
    def yt(j):
        o=[]
        for c in (0,2,1,3):
            p=Pacc(j,c)[1]; h=Qhome(j,c); h1=Qhome(j+1,c); aft=last1[("P",j,c)]+3
            sc=sC1 if c<2 else sC2
            for q in range(4): o.append(A(f"v_fmac_f32 v{h+q}, s{sc}, v{p+q}",after=aft))
            for q in range(4):
                o.append(A(f"v_fma_f32 v{p+q}, s{sc}, v{p+q}, v{h1+q}" if c<2 else f"v_fma_f32 v{p+q}, -s{sc}, v{p+q}, -v{h1+q}",after=aft,before=first2[("P",j,c)]-2))
        return o
    ystore={}; st_eps=[[] for _ in range(2*nep)]; eseq=[0]
    def epi_tile(base,j,neg,aftf,nd):
        fin=[]; cv=[]; P=base[0]
        for cp in range(2):
            F,G=base[cp],base[2+cp]; aft=aftf(cp)
            for sub in range(nep):
                qs=range(4) if nep==1 else (2*sub,2*sub+1)
                ops=[f"v_exp_f32 v{G+q}, v{G+q}" for q in qs]
                ops+=[f"v_exp_f32 v{F+q}, v{F+q} clamp" for q in qs]
                ops+=[f"v_fma_f32 v{F+q}, v{F+q}, s{sKh}, 0.5" for q in qs]
                ops+=[f"v_fma_f32 v{G+q}, v{F+q}, v{G+q}, v{F+q}" for q in qs]
                ops+=[f"v_rcp_f32 v{G+q}, v{G+q}" for q in qs]
                ops+=[(f"v_fma_f32 v{G+q}, v{F+q}, v{G+q}, -v{G+q}" if neg else f"v_fma_f32 v{G+q}, -v{F+q}, v{G+q}, v{G+q}") for q in qs]
                l=[A(t,after=aft) for t in ops]; l[0].ordr+=nd(cp)
                if cp==0: fin.append(l[-1])
                c_=[A(f"v_cvt_pk_bf16_f32 v{P+2*cp+u}, v{G+2*u}, v{G+2*u+1}",after=aft) for u in (range(2) if nep==1 else (sub,))]
                l+=c_; cv+=c_
                if cp==1 and sub==nep-1:
                    so="0" if j<4 else f"s{sSt[j//4-1]}"
                    l+=[A(f"v_permlane16_swap_b32 v{P}, v{P+2}",ordr=list(cv)),A(f"v_permlane16_swap_b32 v{P+1}, v{P+3}"),
                        A(f"buffer_store_dwordx4 v[{P}:{P+3}], v{vK if j==15 else vSt}, s[{sO}:{sO+3}], {so} offen offset:{(j%4)*1024}"+["", " nt", " sc1"][stm0 if (j%2==0 and j//2<nst0) else stm])]
                    ystore[j]=l[-1]
                for x in l: x.before=10**6+eseq[0]; eseq[0]+=1; x.flex=True
                st_eps[cp*nep+sub]+=l
        for x in cv: x.ordr+=fin
    YT={j:yt(j) for j in range(8)}
    for j in range(8):
        epi_tile([Qhome(j,c) for c in range(4)],2*j,False,lambda cp:-1,lambda cp,j=j:[YT[j][8*(2*cp+1)+3]])
    for j in range(6):
        st_tr+=cq(j)
        if j==0:
            st_tr+=[A(f"v_mov_b32_dpp v{BLK+4*c+q}, v{Qhome(0,c)+q} row_shl:2 row_mask:0xf bank_mask:0xf bound_ctrl:0",ordr=[lastX,lastW,st_wr[-1]]) for c in range(4) for q in range(4)]
    for j in range(8):
        if j==5: st_tr+=cq(6,[ystore[0]])
        if j==6: st_tr+=cq(7,[ystore[2]])
        st_tr+=YT[j]
    st_tr+=[A(f"v_mbcnt_lo_u32_b32 v{vK}, -1, 0"),A(f"v_mbcnt_hi_u32_b32 v{vK}, -1, v{vK}"),A(f"v_and_b32 v{vK}, 14, v{vK}"),A(f"v_add_u32 v{vK}, 2, v{vK}"),
            A(f"v_and_b32 v{vK}, 16, v{vK}"),A(f"v_lshlrev_b32 v{vK}, 26, v{vK}"),A(f"v_or_b32 v{vK}, v{vK}, v{vSt}")]
    for j in range(8):
        epi_tile([Pacc(j,c)[1] for c in range(4)],2*j+1,True,lambda cp,j=j:max(last[("P",j,cp)],last[("P",j,2+cp)])+3,lambda cp:[st_tr[-1]])
    pool=[[prevw[r],r] for r in range(WQ,SP,4)]+[[mark[("Q",3)],r] for r in range(SP,SP+12,4)]+[[first2[("P",5+r//16,0)]+2,r] for r in range(0,32,4)]
    rkeys=sorted({b[1] for b in bb if b[1][0]=="r"},key=lambda w:(w[1],w[2],first[w]))
    rreg={}; rload={}; cur=None
    for w in rkeys:
        _,ds,t,c=w
        pool.sort(); aft,reg=pool.pop(0); rreg[w]=reg
        if not (RING-4*xring<=reg<RING): pool.append([last[w],reg])
        else: assert last[w]<mark[('R',3)]
        lst=[]
        for d2 in range(ds,8):
            st=3 if wchk==1 else stage(d2)
            if st not in chks and (d2==ds or (d2,0)<=prods[min(23,3*ds+t+3)]):
                tp=put([polls[st]],0); chks[st]=mkchk(st,tp+ckd)
        ck=chks[3 if wchk==1 else stage(ds)]; aft2=max(aft,ck[0].after+6)
        if cur and cur!=(ds,t): lst.append(A(f"v_add_u32 v{vP2}, 0x8000, v{vP2}"))
        cur=(ds,t)
        ld=A(f"buffer_load_dwordx4 a[{reg}:{reg+3}], v{vP2}, s[{sWs}:{sWs+3}], 0 offen offset:{c*1024} sc1",ordr=([qread[reg+3]] if reg<32 else [])+[ck[-1]])
        lst.append(ld); rload[w]=ld; ld.hard=aft
        put(lst,aft2,lsp/10); ld.before=max(first[w]-4,aft+1)
        if verbose: print(w,"reg",reg,"ld",ld.after,"need",first[w],"LATE" if first[w]-ld.after<lneed else "",file=sys.stderr)
    est=sorted((st_s[i+(1 if st_s[i].kind=="valu" else 0)].after+36*m,i) for (k,m),i in sidx.items())
    ins=[]
    for st in chks:
        t=chks[st][0].after
        ins.append((next((i for e,i in est if e+18>=t),len(st_s)),st))
    for i,_,st in sorted(((i,chks[st][0].after,st) for i,st in ins),reverse=True): st_s[i:i]=chks[st]
    back=[]
    for n,(a,w,x) in enumerate(bb):
        kd,r=(Pacc if a[0]=="P" else Qacc)(a[1],a[2]); xr=xslot[x]
        if w[0]=="w": wr=wreg(*w[1:]); nd=wread[w]
        else: wr=rreg[w]; nd=[rload[w]]
        cin="0" if first[a]==n else f"{kd}[{r}:{r+3}]"
        nd=[xread[x]]+nd
        if first2.get(a)==n: nd=nd+[y for y in YT[a[1]] if f"v{r}" in y.wr or f"v{r+3}" in y.wr]
        back.append(A(f"v_mfma_f32_16x16x32_bf16 {kd}[{r}:{r+3}], a[{wr}:{wr+3}], a[{xr}:{xr+3}], {cin}",needs=nd))
    st_bar=[]
    for k in range(4): st_bar+=[barM[k]]+([barE[k]] if k<3 else [])
    st_bar.append(barS)
    st_diag=[]
    if prof:
        for i in range(20): st_diag.append(I(f"s_memtime s[{60+2*i}:{61+2*i}]","stamp",after=min(N-1,d0+dstep*i),before=min(N-1,d0+dstep*i)+1))
    elif diag:
        for pos in {5:(0,N-1),6:(0,d0,N-1),7:(0,),8:(0,320,640,960,1280,N-1)}[dset]: st_diag.append(stamp(emit=False,after=pos,before=pos+1))
    for x in st_wr[:8]: S.emit(x)
    st_wr=st_wr[8:]
    if dstart:
        stamp(); stamp(needs=xdma[(0,1)])
    S.emit(bar0)
    for x in st_xr[:6]: S.emit(x)
    st_xr=st_xr[6:]
    for l_ in [st_vm,st_s]+st_eps:
        for x in l_:
            if x.kind in VM: x.cost=4 if ', 0 offen' in x.text and x.kind!='vst' else 8
    S.vm_lat=16*wr_lead; S.lead=lead
    S.hooks[tdone+20]=lambda S: setattr(S,'vm_done',vdone)
    S.run(back,[st_bar,st_xr,st_wr,st_vm,st_diag,st_tr,st_s]+st_eps,soft=[2,None,6,1,None,None,None]+[None]*len(st_eps))
    if diag or prof:
        while diag and stamps[0]<8: stamp()
        EM(f"""s_waitcnt lgkmcnt(0)
        s_mov_b32 s{sWs+2}, 0x2000000
        s_lshl_b32 s3, s2, 2
        s_add_u32 s3, s3, s30
        s_lshl_b32 s3, s3, 7
        s_add_u32 s3, s3, 0x1000000
        v_mov_b32 v2, s3
        s_mov_b64 exec, 1""")
        for k in range(32 if diag else 20):
            E(f"v_mov_b32 v3, s{60+(k if diag else 2*k)}"); E(f"buffer_store_dword v3, v2, s[{sWs}:{sWs+3}], 0 offen offset:{4*k}"); E("s_nop 1")
    if kill:
        f0=back[0].idx
        def keep(x):
            if x.idx<f0: return True
            if kill&1 and x.kind=="bar": return False
            if kill&2 and x.kind=="dma" and f"s[{sW}:" in x.text: return False
            if kill&4 and x.kind=="dma" and f"s[{sX}:" in x.text: return False
            if kill&32 and x.kind=="vld" and "dwordx4" in x.text: return False
            if kill&64 and x.kind=="vst" and f"s[{sO}:" in x.text: return False
            return True
        S.out=[x for x in S.out if keep(x)]
    print(f"; est cycles {S.t} waits {S.nwait} nops {S.nnop} over {S.over} n {len(S.out)} bytes {S.off} tail {S.t-back[-1].t}", file=sys.stderr)
    if verbose:
        print(S.overlog,file=sys.stderr)
        print('free slots per 64:',[sum(abs(x) for x in S.left[i:i+64])//4 for i in range(0,N,64)],file=sys.stderr)
    body=S.text().replace("s_getpc_b64 s[56:57]","s_getpc_b64 s[56:57]\nL_pc:").replace("CODE_LEFT","L_code_end-L_pc-4")
    body+="\n    s_endpgm"
    for st in chks:
        body+=f"""
L_spin{st}:
    s_mov_b32 s59, 0x40000
L_spin{st}a:
    buffer_load_dword v{vK2}, off, s[{sD}:{sD+3}], 0 offset:{4*st} sc1
    s_waitcnt vmcnt(0)
    v_cmp_gt_u32 vcc, 4, v{vK2}
    s_sub_u32 s59, s59, 1
    s_cmp_eq_u32 s59, 0
    s_cbranch_scc1 L_back{st}
    s_sleep 4
    s_cbranch_vccnz L_spin{st}a
    s_branch L_back{st}"""
    body+="\n"+helper(RAW0,WSN,diag)
    return wrap(body,"; dilated causal conv, two-phase fast-FIR form (8 products per output pair), gate fused\n",sgpr=102 if prof else 96)

if __name__=="__main__":
    kw={}
    for o in sys.argv[2:]:
        k,v=o.split("="); kw[k]=int(v)
    t=gen(**kw)
    open(sys.argv[1],"w").write(t)
```

```python
import sys, os
sys.path.insert(0, os.path.dirname(__file__))
from common import *
K=1024
DEF=dict(diag=0, dset=0, d0=0, dstep=32, prof=0, dstart=0, verbose=0, kill=0,
  stm=2, stm0=1, nst0=0, xnt=1, ppre=32, ppost=0, lead=60, nep=2, vdone=1600,
  mq0=2, mp0=1, mq=1, mp=1, mq3=1, mp3=0, g0=6, g1=9, g2=12, gt=14, xring=2,
  npre=4, e0q=35, e0l=60, shadow=0, atC=6, shl=2, quietl=40, landl=50, dsp0=45, dsp=50, wr_lead=40,
  oo0=4, oo1=4, oo2=1, atD=4, atE=0, pd=6, pw=4, quietc=90, landc=110, xsp=3, bE=16, bM=18,
  xgap=30, xn=2, x2at=0, x3at=35, xn3=10, q2=100, q3=120, sh3=0, lsp1=50, lsp=55, ckd=50, s3at=0, lneed=60, pcut=12, wchk=2, cslack=30, p3at=40, hla=2, hsq=2, tmall=2, tl2=0, pre1=64, post1=32, hole=20, s3m=0, sdel=2, t0n=1, mq2=1, mp2=1, fpk=0, xfirst=0, amp=0, ampa=0, ampb=7, e0p=1)
def STG(): return (4,6,0,2) if pcut<12 else ((6,0,2,4) if pcut<16 else (0,2,4,6))
def helper(RAW0,WSN,diag):
    H=Sched(); H.shadow=False
    E=lambda t,**k: (lambda i:(H.emit(i),i)[1])(A(t,**k))
    def EM(txt):
        for t in txt.strip().split("\n"): E(t.strip())
    EM("""s_sub_u32 s24, s24, 126
    s_lshl_b32 s24, s24, 1
    s_add_u32 s24, s24, s26
    v_and_b32 v1, 63, v0
    v_lshrrev_b32 v2, 6, v0
    s_nop 0
    v_readfirstlane_b32 s30, v2
    v_lshrrev_b32 v3, 3, v1
    v_and_b32 v4, 2, v3
    v_xor_b32 v4, v4, v1
    v_and_b32 v4, 7, v4
    v_lshlrev_b32 v4, 4, v4
    v_lshl_add_u32 v4, v3, 10, v4
    v_xor_b32 v5, 64, v4
    s_lshl_b32 s24, s24, 2
    s_add_u32 s24, s24, s30
    s_and_b32 s25, s24, 7
    s_lshr_b32 s26, s24, 3
    s_mul_i32 s27, s30, 40960
    v_lshrrev_b32 v6, 4, v1
    v_bfe_u32 v7, v1, 2, 2
    v_lshl_add_u32 v8, v6, 3, v7
    v_lshlrev_b32 v8, 7, v8
    v_and_b32 v9, 2, v7
    v_and_b32 v10, 1, v6
    v_lshl_add_u32 v9, v10, 2, v9
    v_lshl_add_u32 v8, v9, 4, v8
    v_and_b32 v9, 3, v1
    v_lshl_add_u32 v8, v9, 3, v8
    v_add_u32 v10, s27, v8
    v_xor_b32 v11, 32, v10
    v_xor_b32 v12, 64, v10
    v_xor_b32 v13, 0x60, v10
    v_lshlrev_b32 v14, 4, v1
    s_bfe_u32 s28, s25, 0x10001
    s_lshl_b32 s28, s28, 14
    s_and_b32 s29, s25, 1
    s_lshl_b32 s29, s29, 13
    s_add_u32 s28, s28, s29
    s_lshr_b32 s29, s25, 2
    s_lshl_b32 s29, s29, 11
    s_add_u32 s28, s28, s29
    v_add_u32 v14, s28, v14
    v_add_u32 v15, 4096, v14
    s_cmp_lt_u32 s25, 4
    s_mov_b32 s35, 0xbfb8aa3b
    s_cselect_b32 s35, 0x4038aa3b, s35
    s_mov_b32 s34, 0xffff0000
    s_lshl_b32 s25, s25, 7
    s_lshl_b32 s31, s26, 15
    s_add_u32 s25, s25, s31
    v_or_b32 v16, s30, v1
    v_mov_b32 v17, 0
    v_cmp_ne_u32 vcc, 0, v16
    v_mov_b32 v16, 0x40000000
    v_mov_b32 v18, 1
    v_cndmask_b32 v17, v17, v16, vcc""")
    H.emit(I("s_waitcnt lgkmcnt(0)","wait"))
    EM(f"""s_mov_b32 s16, s6
    s_mov_b32 s17, s7
    s_mov_b32 s18, 1310720
    s_mov_b32 s19, 0x20000
    s_mov_b32 s48, s10
    s_mov_b32 s49, s11
    s_mov_b32 s50, 256
    s_mov_b32 s51, 0x20000
    s_mov_b32 s46, {WSN}
    s_mov_b32 s47, 0x20000""")
    DS0=STG(); NB=5
    units=[(st,t) for st in range(4) for t in (1,2,0)]
    taps=lambda t: (2*t-1,2*t) if t else (0,)
    def raw(st,i): return 4*(DS0[st]//2)+(0 if i%2 else 2)+1>=pcut
    D={}
    def dma(u):
        st,t=units[u]; D[u]=[]; g=[]
        for n,i in enumerate(taps(t)):
            for p in range(4):
                x=A(f"buffer_load_dwordx4 v{4+p%2}, s[16:19], s38 offen lds"); D[u].append(x)
                g.append([A(f"s_add_u32 m0, s27, {(u%NB)*8192+n*4096+p*1024}"),A(f"s_add_u32 s38, s25, {i*262144+DS0[st]*32768+p*8192}"),x])
        return g
    for u in range(hla):
        for g in dma(u):
            for x in g: H.emit(x)
    if diag: H.emit(I(f"s_memrealtime s[62:63]\n    s_memrealtime s[64:65]","salu"))
    E(f"s_mul_i32 s39, s26, 163840"); E(f"s_mul_i32 s40, s26, 98304"); E("s_mov_b32 s36, s35"); E("s_mov_b32 s37, s35")
    sig=None
    for u,(st,t) in enumerate(units):
        fr=lambda n,q: 32+32*(u%2)+16*n+4*q
        for n,i in enumerate(taps(t)):
            for q in range(4):
                for h in range(2):
                    E(f"ds_read_b64_tr_b16 v[{fr(n,q)+2*h}:{fr(n,q)+2*h+1}], v{10+q} offset:{(u%NB)*8192+n*4096+h*512}",needs=D[u][4*n:4*n+4])
        nxt=dma(u+hla) if u+hla<len(units) else []
        for n,i in enumerate(taps(t)): E(f"s_add_u32 s{42+n}, s39, {RAW0+(DS0[st]-4)*163840+i*32768}") if raw(st,i) else None
        E(f"s_add_u32 s41, s40, {DS0[st]*98304+t*32768}")
        for q in range(4):
            o=112+4*q
            for w in range(4):
                a=fr(0,q)+w
                E(f"v_lshlrev_b32 v20, 16, v{a}"); E(f"v_and_b32 v21, s34, v{a}")
                if t:
                    b=fr(1,q)+w
                    E(f"v_lshlrev_b32 v22, 16, v{b}"); E(f"v_and_b32 v23, s34, v{b}"); E("v_pk_add_f32 v[20:21], v[20:21], v[22:23]")
                E("v_pk_mul_f32 v[20:21], v[20:21], s[36:37]"); E(f"v_cvt_pk_bf16_f32 v{o+w}, v20, v21")
                if w%2==0 and nxt:
                    for x in nxt.pop(0): H.emit(x)
                if w%2==1 and w//2<len(taps(t)) and raw(st,taps(t)[w//2]):
                    n=w//2; E(f"buffer_store_dwordx4 v[{fr(n,q)}:{fr(n,q)+3}], v{14+q//2}, s[44:47], s{42+n} offen offset:{(q%2)*1024} sc1")
            if q==hsq and sig:
                s0,last=sig; sig=None
                E("s_barrier",needs=[last]); E(f"buffer_atomic_add v18, v17, s[48:51], 0 offen offset:{4*s0}")
                if diag: H.emit(I(f"s_memrealtime s[{66+2*s0}:{67+2*s0}]","salu"))
            lst=E(f"buffer_store_dwordx4 v[{o}:{o+3}], v{14+q//2}, s[44:47], s41 offen offset:{(q%2)*1024} sc1")
        assert not nxt
        if t==0: sig=(st,lst)
    s0,last=sig
    E("s_barrier",needs=[last]); E(f"buffer_atomic_add v18, v17, s[48:51], 0 offen offset:{4*s0}")
    if diag: H.emit(I(f"s_memrealtime s[72:73]","salu"))
    if diag:
        EM("""s_waitcnt lgkmcnt(0)
        s_mov_b32 s46, 0x2000000
        s_lshl_b32 s3, s2, 2
        s_add_u32 s3, s3, s30
        s_lshl_b32 s3, s3, 7
        s_add_u32 s3, s3, 0x1000000
        v_mov_b32 v2, s3
        s_mov_b64 exec, 1""")
        for k in range(16):
            E(f"v_mov_b32 v3, s{60+k}"); E(f"buffer_store_dword v3, v2, s[44:47], 0 offen offset:{4*k}"); E("s_nop 1")
    return "L_helper:\n"+H.text()

def gen(**kw):
    o_=dict(DEF); assert not set(kw)-set(o_), set(kw)-set(o_); o_.update(kw); globals().update(o_)
    STRIDE=254; NT=" nt" if xnt else ""
    S=Sched()
    E=lambda t,**k: (lambda i:(S.emit(i),i)[1])(A(t,**k))
    def EM(txt):
        for t in txt.strip().split("\n"): E(t.strip())
    vXr,vS,vP2,vSt,vK=0,2,3,4,5
    TA,TB,T0,T1=6,10,14,15
    vXa,vXb,vW,vWr=16,17,18,20
    vRs,vRr,vFl,vOne,vTw=22,23,24,25,26
    vL,vWv,vG,vU0,vU1=27,28,29,30,31
    RP=28
    vK2=T1
    BLK=16
    def Pacc(j,c): return ("v",32+16*j+4*c)
    def Qacc(j,c): return ("v",160+16*j+4*c) if j<6 else ("a",16*(j-6)+4*c)
    def Qhome(j,c): return BLK+4*c if j==8 else 160+16*(j if j<6 else j-6)+4*c
    WQ,WP,SP,RING,NR=32,96,192,208,12
    sX,sW,sO,sWs,sD=12,16,20,44,48
    sC1,sC2,sKh,sMask,sSc=31,32,33,34,35
    sWb,sXb,sT,sRA,sRB,sRO,sRL,sT2=36,37,38,39,40,41,42,43
    sSt=[52,53,54]; sOA,sOB=24,25
    OREG=[0,20*K,80*K,100*K]; EREG=[40*K,60*K,40*K,60*K]; WIN=[0,20*K,40*K,60*K]; SREG=OREG[:3]+[EREG[2]]; SWIN=[0,20*K,40*K,40*K]
    UNITS=[100*K,108*K]+[120*K+8*K*u for u in range(5)]; WB0=100*K
    npk=4; RAW0=786432; WSN=RAW0+(8-npk)*163840; OOB="0x40000000"
    stamps=[0]
    def stamp(emit=True,**k):
        if not diag: return None
        n=stamps[0]; stamps[0]+=1
        i=I(f"s_memrealtime s[{60+2*n}:{61+2*n}]\n    s_memtime s[{76+2*n}:{77+2*n}]","salu",cost=8,**k)
        if emit: S.emit(i)
        return i
    stamp()
    EM(f"""s_load_dwordx4 s[4:7], s[0:1], 0
    s_load_dwordx4 s[8:11], s[0:1], 16
    s_load_dwordx2 s[{sWs}:{sWs+1}], s[0:1], 32
    s_cmp_ge_u32 s2, 256
    s_cbranch_scc1 L_exit
    s_lshr_b32 s24, s2, 4
    s_and_b32 s25, s2, 7
    s_lshl_b32 s24, s24, 3
    s_add_u32 s24, s24, s25
    s_bfe_u32 s26, s2, 0x10003
    s_cmp_ge_u32 s24, 126
    s_cbranch_scc1 L_helper
    s_cmp_ge_u32 s24, 63
    s_cselect_b32 s27, 63, 0
    s_cselect_b32 s28, 8192000, 0
    s_sub_u32 s24, s24, s27
    s_mul_i32 s29, s24, {STRIDE*512}
    s_lshl_b32 s26, s26, 8
    v_and_b32 v{vL}, 63, v0
    v_lshrrev_b32 v{vWv}, 6, v0
    v_lshrrev_b32 v{vG}, 4, v{vL}
    v_readfirstlane_b32 s30, v{vWv}
    v_and_b32 v{vU0}, 1, v{vWv}
    v_lshl_add_u32 v{vU0}, v{vU0}, 2, v{vG}
    v_xor_b32 v{vU1}, v{vU0}, v{vL}
    v_and_b32 v{vU1}, 7, v{vU1}
    v_lshlrev_b32 v{vU1}, 4, v{vU1}
    v_lshl_add_u32 v{vU1}, v{vU0}, 14, v{vU1}
    v_bfe_u32 v{vU0}, v{vL}, 3, 1
    v_lshl_add_u32 v{vU1}, v{vU0}, 9, v{vU1}
    v_lshrrev_b32 v{vU0}, 1, v{vWv}
    v_mul_u32_u24 v{vU0}, 10240, v{vU0}
    v_add3_u32 v{vXb}, v{vU0}, v{vU1}, s29
    v_add_u32 v{vXa}, 0xfffff000, v{vXb}
    s_lshl_b32 s{sWb}, s30, 11
    s_lshr_b32 s{sXb}, s30, 1
    s_mul_i32 s{sXb}, s{sXb}, 10240
    s_and_b32 s{sT}, s30, 1
    s_lshl_b32 s{sT}, s{sT}, 10
    s_add_u32 s{sXb}, s{sXb}, s{sT}""")
    WCALC=f"""v_lshrrev_b32 v{vU0}, 5, v{vL}
    v_lshlrev_b32 v{vU0}, 14, v{vU0}
    v_bfe_u32 v{vU1}, v{vL}, 3, 1
    v_lshl_add_u32 v{vU0}, v{vU1}, 13, v{vU0}
    v_bfe_u32 v{vU1}, v{vL}, 4, 1
    v_lshl_add_u32 v{vU0}, v{vU1}, 12, v{vU0}
    v_bfe_u32 v{vU1}, v{vL}, 2, 1
    v_lshl_add_u32 v{vU0}, v{vU1}, 11, v{vU0}
    v_and_b32 v{vU1}, 3, v{vL}
    v_lshl_add_u32 v{vU0}, v{vU1}, 4, v{vU0}
    v_lshl_add_u32 v{vU0}, v{vWv}, 6, v{vU0}
    v_add_u32 v{vW}, s26, v{vU0}
    v_xor_b32 v{vW+1}, 32, v{vW}"""
    EM(f"""s_mov_b32 s{sW+2}, 1310720
    s_mov_b32 s{sW+3}, 0x20000
    s_mov_b32 s{sX+2}, 8192000
    s_mov_b32 s{sX+3}, 0x20000""")
    if not xfirst: EM(WCALC)
    S.emit(I("s_waitcnt lgkmcnt(0)","wait"))
    if dstart: stamp()
    EM(f"""s_add_u32 s{sX}, s4, s28
    s_addc_u32 s{sX+1}, s5, 0
    s_mov_b32 s{sW}, s6
    s_mov_b32 s{sW+1}, s7""")
    wdma={}; xdma={}; wunit={}
    def mk_wdma(key,base):
        ds,i,fg=key
        g=[A(f"s_add_u32 m0, s{sWb}, {base}"), A(f"s_mov_b32 s{sT}, {i*262144+ds*32768+fg*512}")]
        d=[A(f"buffer_load_dwordx4 v{vW+p}, s[{sW}:{sW+3}], s{sT} offen offset:{p*1024} lds") for p in range(2)]
        wdma[key]=d; wunit[key]=base; return g+d
    def mk_xdma(k,cls):
        reg=(OREG if cls else EREG)[k]; so=cls*1024+k*128
        o=[];d=[]
        for m in range(5):
            if m%2==0: o.append(A(f"s_add_u32 m0, s{sXb}, {reg+m*2048}"))
            if m in (0,4): o.append(A(f"s_mov_b32 s{sT}, {so+(4096 if m==4 else 0)}"))
            x=A(f"buffer_load_dwordx4 v{vXa if m<2 else vXb}, s[{sX}:{sX+3}], s{sT} offen offset:{(m%2)*2048}{NT} lds"); o.append(x); d.append(x)
        xdma[(k,cls)]=d; return o
    def pmode(kind,k):
        return ((mq0,mq,mq2,mq3) if kind=="Q" else (mp0,mp,mp2,mp3))[k]
    horder=[]
    def pidx(ds,i): return 4*(ds//2)+(0 if i%2 else 2)+ds%2
    for k in range(4):
        for kind,taps in (("Q",(1,3)),("P",(0,2,4))):
            m=pmode(kind,k)
            if m==2: horder+= [(2*k+e,i,fg) for e in range(2) for i in taps for fg in range(2)]
            elif m==1: horder+= [(2*k+e,i,fg) for e in range(2) for fg in range(2) for i in taps]
            else:  horder+= [(2*k+e,i,fg) for fg in range(2) for e in range(2) for i in taps]
    horder=[h for h in horder if pidx(h[0],h[1])<pcut]
    prevocc={}; wgroups={}; q=[(u,None) for u in UNITS]
    for n,h in enumerate(horder):
        while True:
            u,ph=q.pop(0)
            if not (u<120*K and n>=44): break
        prevocc[h]=ph; q.append((u,h)); wgroups[h]=mk_wdma(h,u)
    xg={(k,cls):mk_xdma(k,cls) for k in range(4) for cls in (1,0)}
    if xfirst:
        for x in xg[(0,1)]: S.emit(x)
        EM(WCALC)
    for h in horder[:2]:
        for x in wgroups[h]: S.emit(x)
    for x in xg[(0,1)]*(1-xfirst): S.emit(x)
    if dstart: stamp()
    EM(f"""s_getpc_b64 s[56:57]
    s_lshr_b32 s58, s2, 3
    s_lshl_b32 s58, s58, 2
    s_add_u32 s58, s58, s30
    s_lshl_b32 s59, s58, 9
    v_min_u32 v{vU0}, 3, v{vL}
    v_lshlrev_b32 v{vU0}, 7, v{vU0}
    v_add_u32 v{vU0}, s59, v{vU0}
    s_mov_b32 s59, CODE_LEFT
    v_min_u32 v{vU0}, s59, v{vU0}
    global_load_dword a{SP}, v{vU0}, s[56:57]
    s_mul_i32 s58, s58, 20
    v_min_u32 v{vTw}, 19, v{vL}
    v_add_u32 v{vTw}, s58, v{vTw}
    v_lshrrev_b32 v{vU1}, 9, v{vTw}
    v_mul_u32_u24 v{vU1}, 1536, v{vU1}
    v_add_u32 v{vTw}, v{vTw}, v{vU1}
    v_lshlrev_b32 v{vTw}, 7, v{vTw}
    s_mov_b32 s55, 65536""")
    if tmall!=3: E(f"buffer_load_dword a{SP+1}, v{vTw}, s[{sW}:{sW+3}], 0 offen")
    if tmall==3:
        EM(f"""s_lshl_b32 s58, s2, 2
        s_add_u32 s58, s58, s30
        s_lshl_b32 s58, s58, 3
        v_and_b32 v{vU0}, 7, v{vL}
        v_add_u32 v{vU0}, s58, v{vU0}
        v_mul_u32_u24 v{vU1}, 683, v{vU0}
        v_lshrrev_b32 v{vU1}, 20, v{vU1}
        v_lshlrev_b32 v{vU1}, 9, v{vU1}
        v_add_u32 v{vU0}, v{vU0}, v{vU1}
        v_lshlrev_b32 v{vU0}, 7, v{vU0}
        buffer_load_dword a{SP+3}, v{vU0}, s[{sW}:{sW+3}], 0 offen""")
    if tmall in (1,2):
        EM(f"""s_lshl_b32 s58, s2, 2
        s_add_u32 s58, s58, s30
        s_mul_i32 s58, s58, 5
        v_min_u32 v{vU0}, 4, v{vL}
        v_add_u32 v{vU0}, s58, v{vU0}
        v_lshrrev_b32 v{vU1}, 10, v{vU0}
        v_lshlrev_b32 v{vU1}, 10, v{vU1}
        v_add_u32 v{vU0}, v{vU0}, v{vU1}
        v_lshlrev_b32 v{vU0}, 7, v{vU0}
        s_mov_b32 s58, {131072 if tmall==1 else 65536}
        buffer_load_dword a{SP+3}, v{vU0}, s[{sW}:{sW+3}], s58 offen""")
    EM("s_mov_b32 s24, 131072\ns_mov_b32 s25, 196608")
    tC,tD,tE=[A(f"buffer_load_dword a{SP+2}, v{vTw}, s[{sW}:{sW+3}], s{r} offen") for r in (55,24,25)]
    EM(f"""v_and_b32 v{vU0}, 15, v{vL}
    v_lshrrev_b32 v{vU1}, 1, v{vU0}
    v_xor_b32 v{T0}, v{vU1}, v{vG}
    v_lshlrev_b32 v{T0}, 4, v{T0}
    v_and_b32 v{T1}, 7, v{vL}
    v_lshl_add_u32 v{T0}, v{T1}, 7, v{T0}
    v_bfe_u32 v{T1}, v{vL}, 3, 1
    v_lshl_add_u32 v{vXr}, v{T1}, 10, v{T0}
    v_xor_b32 v{vXr+1}, 64, v{vXr}
    v_lshlrev_b32 v{T0}, 4, v{vL}
    v_add_u32 v{vS}, s{sXb}, v{T0}
    s_lshl_b32 s58, s26, 6
    s_lshl_b32 s59, s30, 12
    s_add_u32 s58, s58, s59
    v_add_u32 v{vP2}, s58, v{T0}
    v_and_b32 v{T0}, 1, v{vU0}
    v_lshl_add_u32 v{T0}, v{vU1}, 5, v{T0}
    v_lshlrev_b32 v{T0}, 9, v{T0}
    v_and_b32 v{T1}, 1, v{vG}
    v_lshl_add_u32 v{T0}, v{T1}, 5, v{T0}
    v_lshrrev_b32 v{T1}, 1, v{vG}
    v_lshl_add_u32 v{T0}, v{T1}, 4, v{T0}
    v_lshl_add_u32 v{T0}, v{vWv}, 6, v{T0}
    s_add_u32 s29, s29, s26
    v_add_u32 v{vSt}, s29, v{T0}
    v_bfe_u32 v{T0}, v{vL}, 2, 1
    v_lshlrev_b32 v{T1}, 10, v{T0}
    v_lshl_add_u32 v{T1}, v{T0}, 5, v{T1}
    v_lshrrev_b32 v{T0}, 5, v{vL}
    v_lshl_add_u32 v{T1}, v{T0}, 9, v{T1}
    v_bfe_u32 v{T0}, v{vL}, 4, 1
    v_lshl_add_u32 v{T1}, v{T0}, 7, v{T1}
    v_bfe_u32 v{T0}, v{vL}, 3, 1
    v_lshl_add_u32 v{T1}, v{T0}, 6, v{T1}
    v_and_b32 v{T0}, 3, v{vL}
    v_lshl_add_u32 v{T1}, v{T0}, 3, v{T1}
    s_add_u32 s58, s{sWb}, {WB0}
    v_add_u32 v{vWr}, s58, v{T1}
    v_xor_b32 v{vWr+1}, 32, v{vWr}
    v_mov_b32 v{vK}, 0xc1800000
    s_add_u32 s{sO}, s8, s28
    s_addc_u32 s{sO+1}, s9, 0
    s_mov_b32 s{sO+2}, 8192000
    s_mov_b32 s{sO+3}, 0x20000
    s_mov_b32 s{sD}, s10
    s_mov_b32 s{sD+1}, s11
    s_mov_b32 s{sD+2}, 256
    s_mov_b32 s{sD+3}, 0x20000
    s_mov_b32 s{sWs+2}, {WSN}
    s_mov_b32 s{sWs+3}, 0x20000
    s_mov_b32 s{sC1}, 0xc038aa3b
    s_mov_b32 s{sC2}, 0xbfb8aa3b
    s_mov_b32 s{sKh}, 0x47000000
    s_mov_b32 s{sMask}, 0xffff0000
    s_mov_b32 s{sSt[0]}, 4096
    s_mov_b32 s{sSt[1]}, 8192
    s_mov_b32 s{sSt[2]}, 12288""")
    br=I("s_branch L_main","salu"); S.emit(br); br.text+="\n.p2align 12\nL_main:"; S.off=0; S.pre=pre1; S.post=post1
    for x in xg[(0,0)]*(e0p==2): S.emit(x)
    for h in horder[2:npre]:
        for x in wgroups[h]: S.emit(x)
    for x in xg[(0,0)]*(e0p==1): S.emit(x)
    if dstart: stamp()
    bb=[]; mark={}
    def part(kind,k):
        taps=(1,3) if kind=="Q" else (0,2,4); cls=1 if kind=="Q" else 0; m=pmode(kind,k)
        if m==2:
            for e in range(2):
                for i in taps:
                    for j in range(8):
                        for c in range(4): bb.append(((kind,j,c),("w",2*k+e,i,c),(k,cls,j+i//2,e,i)))
        else:
            fl=0
            for es in ([(0,),(1,)] if m==1 else [(0,1)]):
                for j in range(8):
                    cs=[0,1,2,3]
                    if j%2 and j!=7: cs=cs[::-1]
                    for c in cs:
                        seq=[(e,i) for e in es for i in (taps if e==es[0] else taps[::-1])]
                        if fl: seq=seq[::-1]
                        fl^=1
                        for e,i in seq: bb.append(((kind,j,c),("w",2*k+e,i,c),(k,cls,j+i//2,e,0)))
    for k in range(4):
        mark[("Q",k)]=len(bb); part("Q",k)
        mark[("P",k)]=len(bb); part("P",k)
    mark["R"]=len(bb)
    prods=[(ds,t) for ds in range(8) for t in range(3)]
    cuts=[0,g0,g1,g2,gt,24]
    for gi,gk in enumerate((0,2,3,4,5)):
        g=prods[cuts[gi]:cuts[gi+1]]; dss=sorted({p[0] for p in g})
        mark[("R",gk)]=len(bb); fl=0
        for j in range(8):
            cs=[0,2,1,3]
            if gi<4 and j%2 and j!=7: cs=cs[::-1]
            tn=t0n if gi==4 else 1
            if j<tn and len(dss)>1:
                for ds in dss*(j==0):
                    for j2 in range(tn):
                        for c in cs:
                            for d2,t in g:
                                if d2==ds: bb.append((("P",j2,c),("r",ds,t,c),(ds//2,2,j2+t,ds%2,gi)))
                continue
            for c in cs:
                seq=[]
                for n,ds in enumerate(dss):
                    q_=[p for p in g if p[0]==ds]; seq+= q_ if n%2==0 else q_[::-1]
                if fl: seq=seq[::-1]
                fl^=1
                for ds,t in seq: bb.append((("P",j,c),("r",ds,t,c),(ds//2,2,j+t,ds%2,gi)))
    N=len(bb); assert N==2048
    first={}; last={}; last1={}; first2={}
    for n,(a,w,x) in enumerate(bb):
        for key in (a,w,("x",x)):
            first.setdefault(key,n); last[key]=n
        if n<mark["R"]: last1[a]=n
        else: first2.setdefault(a,n)
    endP=lambda k: mark[("Q",k+1)] if k<3 else mark["R"]
    bar0=A("s_barrier",needs=xdma[(0,1)])
    barM={k:A("s_barrier",needs=list(xdma[(k,0)]),after=mark[("P",k)]-bM,before=mark[("P",k)]-bM+6) for k in range(4)}
    barE={k:A("s_barrier",needs=list(xdma[(k+1,1)]),after=endP(k)-bE,before=endP(k)-bE+6) for k in range(3)}
    barS=A("s_barrier",after=mark[("R",5)]-60,before=mark[("R",5)]-40)
    def rebase(d,**k): return [A(f"v_add_u32 v{r}, {d&0xffffffff:#x}, v{r}",**k) for r in (vXr,vXr+1)]
    reb={k+1:rebase(20*K,needs=[barE[k]]) for k in range(3)}; reb[4]=rebase(-60*K); reb[5]=rebase(40*K)
    xorder=sorted({b[2] for b in bb}, key=lambda x:first[("x",x)])
    slots=[(-1,RING+4*s) for s in range(NR)]+[(mark[('R',3)],RING-4-4*s) for s in range(xring)]
    xslot={}; xread={}; st_xr=[]; curwin=0
    for x in xorder:
        k,cls,a,e,_=x
        slots.sort(); aft,reg=slots.pop(0); slots.append((last[("x",x)],reg)); xslot[x]=reg
        f=first[("x",x)]
        if cls<2: win=k; base=(OREG if cls else EREG)[k]-WIN[k]; nd=[(bar0 if k==0 else barE[k-1]) if cls else barM[k]]
        else: win=4 if k<2 else 5; base=SREG[k]-(0 if k<2 else 40*K); nd=[barM[3]] if k<3 or s3m else [barS]
        if win!=curwin:
            for r in reb[win]: r.after=max(aft,f-40)-1; st_xr.append(r)
            curwin=win
        ins=A(f"ds_read_b128 a[{reg}:{reg+3}], v{vXr+e} offset:{base+a*2048}", needs=nd, after=max(aft,f-40), before=max(f-9,aft+1))
        xread[x]=ins; st_xr.append(ins)
    for k in range(4): barM[k].needs.append([xread[x] for x in xorder if x[0]==k and x[1]==1][-1])
    barE[2].needs.append([xread[x] for x in xorder if x[0]==2 and x[1]==0][-1])
    def wreg(ds,i,c):
        e=ds%2
        return (WQ+32*e+16*(i//2)+4*c) if i%2 else (WP+48*e+16*(i//2)+4*c)
    wread={}; st_wr=[]; prevw={}; hreads={}
    for h in horder:
        ds,i,fg=h
        for cp in range(2):
            c=2*fg+cp; reg=wreg(ds,i,c); key=("w",ds,i,c)
            aft=prevw.get(reg,-1); prevw[reg]=last[key]
            for hh in range(2):
                ins=A(f"ds_read_b64_tr_b16 a[{reg+2*hh}:{reg+2*hh+1}], v{vWr+cp} offset:{wunit[h]-WB0+hh*256}", needs=wdma[h], after=aft, before=max(first[key]-9,aft+1))
                ins.soft=True; ins.hard=aft
                wread.setdefault(key,[]).append(ins); hreads.setdefault(h,[]).append(ins); st_wr.append(ins)
    st_vm=[]; tl=[-4]
    def put(lst,t,sp=5):
        for x in lst:
            if x.kind in VM: tl[0]=max(t,tl[0]+sp); x.after=int(tl[0])
            else: x.after=int(max(t-1,tl[0]+sp-2))
            x.soft=True; st_vm.append(x)
        return int(tl[0])
    vPv=T1+0
    def mkpoll(st,reg): return A(f"buffer_load_dword a{reg}, off, s[{sD}:{sD+3}], 0 offset:{4*st} sc1")
    polls=[mkpoll(st,SP+12+st) for st in range(4)]
    stage=lambda ds: STG().index(ds&~1)
    vK2=T1; chks={}
    def mkchk(st,t):
        return [A(f"v_accvgpr_read_b32 v{vK2}, a{SP+12+st}",after=t,needs=[polls[st]]),A(f"v_cmp_gt_u32 vcc, 4, v{vK2}",after=t),A("s_nop 0"),A("s_nop 0"),
                I(f"s_cbranch_vccnz L_spin{st}\nL_back{st}:","salu",rd=["vcc"],after=t,before=t+cslack)]
    items=list(horder)
    wk=sorted({b[1][1:3] for b in bb if b[1][0]=="w" and pidx(*b[1][1:3])>=pcut},key=lambda w:min(first[("w",)+w+(c,)] for c in range(4)))
    items+=wk
    lastof=lambda ds,odd: max(n for n,h in enumerate(items) if h[0]==ds and h[1]%2==odd)+1
    epi={lastof(2*k+1,0)+(oo0,oo1,oo2)[k]:k+1 for k in range(3)}
    lone={npre+atC:tC} if tl2&1 else {}
    if pcut>8 and tl2&2: lone[lastof(2,0)+atD]=tD
    if pcut>12: lone[lastof(4,0)+atE]=tE
    pollat={}
    for n,h in enumerate(items):
        if len(h)==2 and stage(h[0]) not in pollat.values(): pollat[n-pd]=stage(h[0])
    pollat[len(items)-pw]=3 if wchk==1 else stage(0)
    for k in (2,3): xg[(k,0)][2].needs.append(barM[k-1])
    xg[(3,1)][2].needs.append(barM[2])
    rdt={h:-1 for h in horder[:npre]}
    notbefore=e0l; resume=e0q; nsh=shadow
    for n,h in enumerate(items):
        if n<npre: continue
        sp=(dsp0 if h[0]<2 else dsp)/10
        if n in pollat:
            st=pollat[n]; tp=put([polls[st]],resume if n not in epi else 0,3); chks[st]=mkchk(st,max(tp+ckd,notbefore))
        if n in epi:
            k=epi[n]; t0=tl[0]+sp
            if k>1: t0=max(t0,barM[k-1].before+1)
            put(xg[(k,1)]+xg[(k,0)],t0,xsp)
            resume=t0+quietc; notbefore=t0+landc; nsh=0
            if verbose: print("episode",k,t0,file=sys.stderr)
        if n in lone:
            t0=put([lone[n]],resume if nsh==0 else 0,3)
            if nsh==0: nsh=shl; resume=t0+quietl
            notbefore=max(notbefore,t0+landl)
        if len(h)==2:
            ds,i=h; g=[A(f"s_mov_b32 s{sT2}, {RAW0+(ds-npk)*163840+i*32768}")]
            for c in sorted(range(4),key=lambda c:first[("w",ds,i,c)]):
                w=("w",ds,i,c); reg=wreg(ds,i,c); aft=prevw[reg]; prevw[reg]=last[w]
                ld=A(f"buffer_load_dwordx4 a[{reg}:{reg+3}], v{vP2}, s[{sWs}:{sWs+3}], s{sT2} offen offset:{c*1024} sc1",ordr=[chks[stage(ds)][-1]]); ld.hard=aft
                t=put(g+[ld],max(aft,resume,chks[stage(ds)][0].after+6),lsp1/10); g=[]
                ld.before=max(first[w]-4,aft+1); wread[w]=[ld]
                if verbose and first[w]-t<lneed: print(w,"ld",t,"need",first[w],"LATE",file=sys.stderr)
            continue
        ph=prevocc[h]
        t=-1 if ph is None else rdt[ph]+8
        if nsh>0: nsh-=1
        else: t=max(t,resume)
        if ph is not None: wgroups[h][2].needs+=hreads[ph]
        t=put(wgroups[h],t,sp)
        dl=min(x.before for x in hreads[h])
        if t>dl-14:
            for x in wgroups[h]: x.before=dl-13
            tl[0]=t=dl-14
        r=min(max(t+wr_lead,max(x.after for x in hreads[h]),notbefore,max(rdt.values())),dl-3)
        for x in hreads[h]: x.after=max(x.after,min(r,dl-1))
        rdt[h]=r+2; lastW=wgroups[h][-1]
        if verbose>1: print(h,"dma",t,"read",r,"need",min(first[("w",h[0],h[1],2*h[2]+cp)] for cp in range(2)),file=sys.stderr)
    lastX=xdma[(3,0)][-1]; tdone=max(rdt.values())
    st_s=[]
    swr={}; sidx={}
    for k in range(4):
        t0=mark[("P",k)]+4 if k<3 else mark[("Q",3)]+s3at
        for m in range(5):
            sidx[(k,m)]=len(st_s)
            if k in (1,2) and m==0: st_s.append(A(f"v_add_u32 v{vS}, {20*K}, v{vS}",after=t0-4))
            if k==3 and m in (2,4):
                st_s.append(A(f"v_add_u32 v{vS}, 4096, v{vS}",after=t0)); SWIN[3]+=4096
            st_s.append(A(f"ds_read_b128 v[{TA}:{TA+3}], v{vS} offset:{EREG[k]-SWIN[k]+m*2048}",needs=[barM[k]] if k<3 else [barE[2],xdma[(3,0)][m]],after=t0))
            st_s.append(A(f"ds_read_b128 v[{TB}:{TB+3}], v{vS} offset:{OREG[k]-SWIN[k]+m*2048}",after=t0))
            for q in range(4):
                a,b=TA+q,TB+q
                st_s+=[A(t,after=t0) for t in (f"v_lshlrev_b32 v{T0}, 16, v{a}",f"v_lshlrev_b32 v{T1}, 16, v{b}",f"v_and_b32 v{a}, s{sMask}, v{a}",f"v_and_b32 v{b}, s{sMask}, v{b}",
                   f"v_add_f32 v{T0}, v{T0}, v{T1}",f"v_add_f32 v{a}, v{a}, v{b}",f"v_cvt_pk_bf16_f32 v{a}, v{T0}, v{a}")]
            w=A(f"ds_write_b128 v{vS}, v[{TA}:{TA+3}] offset:{SREG[k]-SWIN[k]+m*2048}",after=t0,cost=8); st_s.append(w); swr[(k,m)]=w
        (barM[min(k+1,3)] if k<3 or s3m else barS).needs.append(swr[(k,4)])
    st_tr=[]; qread={}
    def cq(j,nd=()):
        o=[]
        for c in range(4):
            kind,src=Qacc(j,c); h=Qhome(j,c)
            for q in range(4):
                if kind=="a":
                    x=A(f"v_accvgpr_read_b32 v{h+q}, a{src+q}",ordr=list(nd)); o.append(x); qread[src+q]=x
            for q in range(4):
                o.append(A(f"v_fma_f32 v{h+q}, s{sC1}, v{h+q}, v{vK}" if c<2 else f"v_mul_f32 v{h+q}, s{sC2}, v{h+q}",after=last1[("Q",j,c)]+3))
        return o
    def yt(j):
        o=[]
        for c in (0,2,1,3):
            p=Pacc(j,c)[1]; h=Qhome(j,c); h1=Qhome(j+1,c); aft=last1[("P",j,c)]+3
            sc=sC1 if c<2 else sC2
            for q in range(4): o.append(A(f"v_fmac_f32 v{h+q}, s{sc}, v{p+q}",after=aft))
            for q in range(4):
                o.append(A(f"v_fma_f32 v{p+q}, s{sc}, v{p+q}, v{h1+q}" if c<2 else f"v_fma_f32 v{p+q}, -s{sc}, v{p+q}, -v{h1+q}",after=aft,before=first2[("P",j,c)]-2))
        return o
    st_del=[]; ystore={}; st_eps=[[] for _ in range(2*nep)]; eseq=[0]
    def epi_tile(base,j,neg,aftf,nd):
        fin=[]; cv=[]; P=base[0]
        for cp in range(2):
            F,G=base[cp],base[2+cp]; aft=aftf(cp)
            for sub in range(nep):
                qs=range(4) if nep==1 else (2*sub,2*sub+1)
                ops=[f"v_exp_f32 v{G+q}, v{G+q}" for q in qs]
                ops+=[f"v_exp_f32 v{F+q}, v{F+q} clamp" for q in qs]
                ops+=[f"v_fma_f32 v{F+q}, v{F+q}, s{sKh}, 0.5" for q in qs]
                ops+=[f"v_fma_f32 v{G+q}, v{F+q}, v{G+q}, v{F+q}" for q in qs]
                ops+=[f"v_rcp_f32 v{G+q}, v{G+q}" for q in qs]
                ops+=[(f"v_fma_f32 v{G+q}, v{F+q}, v{G+q}, -v{G+q}" if neg else f"v_fma_f32 v{G+q}, -v{F+q}, v{G+q}, v{G+q}") for q in qs]
                l=[A(t,after=aft) for t in ops]; l[0].ordr+=nd(cp)
                if cp==0: fin.append(l[-1])
                c_=[A(f"v_cvt_pk_bf16_f32 v{P+2*cp+u}, v{G+2*u}, v{G+2*u+1}",after=aft) for u in (range(2) if nep==1 else (sub,))]
                l+=c_; cv+=c_
                if cp==1 and sub==nep-1:
                    so="0" if j<4 else f"s{sSt[j//4-1]}"
                    l+=[A(f"v_permlane16_swap_b32 v{P}, v{P+2}",ordr=list(cv)),A(f"v_permlane16_swap_b32 v{P+1}, v{P+3}"),
                        A(f"buffer_store_dwordx4 v[{P}:{P+3}], v{vK if j==15 else vSt}, s[{sO}:{sO+3}], {so} offen offset:{(j%4)*1024}"+["", " nt", " sc1"][stm0 if (j%2==0 and j//2<nst0) else stm])]
                    ystore[j]=l[-1]
                    if sdel and j%2==0 and j//2>=sdel: x=l.pop(); x.ordr.append(l[-1]); x.before=10**6+eseq[0]; st_del.append(x)
                for x in l: x.before=10**6+eseq[0]; eseq[0]+=1; x.flex=True
                st_eps[cp*nep+sub]+=l
        for x in cv: x.ordr+=fin
    YT={j:yt(j) for j in range(8)}
    for j in range(8):
        epi_tile([Qhome(j,c) for c in range(4)],2*j,False,lambda cp:-1,lambda cp,j=j:[YT[j][8*(2*cp+1)+3]])
    for j in range(6):
        st_tr+=cq(j)
        if j==0:
            st_tr+=[A(f"v_mov_b32_dpp v{BLK+4*c+q}, v{Qhome(0,c)+q} row_shl:2 row_mask:0xf bank_mask:0xf bound_ctrl:0",ordr=[lastX,lastW,st_wr[-1]]) for c in range(4) for q in range(4)]
    for j in range(8):
        if j==5: st_tr+=cq(6,[ystore[0]])
        if j==6: st_tr+=cq(7,[ystore[2]])
        st_tr+=YT[j]
    st_tr+=[A(f"v_mbcnt_lo_u32_b32 v{vK}, -1, 0"),A(f"v_mbcnt_hi_u32_b32 v{vK}, -1, v{vK}"),A(f"v_and_b32 v{vK}, 14, v{vK}"),A(f"v_add_u32 v{vK}, 2, v{vK}"),
            A(f"v_and_b32 v{vK}, 16, v{vK}"),A(f"v_lshlrev_b32 v{vK}, 26, v{vK}"),A(f"v_or_b32 v{vK}, v{vK}, v{vSt}")]
    for j in range(8):
        epi_tile([Pacc(j,c)[1] for c in range(4)],2*j+1,True,lambda cp,j=j:max(last[("P",j,cp)],last[("P",j,2+cp)])+3,lambda cp:[st_tr[-1]])
    pool=[[prevw[r],r] for r in range(WQ,SP,4)]+[[mark[("Q",3)],r] for r in range(SP,SP+12,4)]+[[first2[("P",5+r//16,0)]+2,r] for r in range(0,32,4)]
    rkeys=sorted({b[1] for b in bb if b[1][0]=="r"},key=lambda w:(w[1],w[2],first[w]))
    rreg={}; rload={}; cur=None
    for w in rkeys:
        _,ds,t,c=w
        pool.sort(); aft,reg=pool.pop(0); rreg[w]=reg
        if not (RING-4*xring<=reg<RING): pool.append([last[w],reg])
        else: assert last[w]<mark[('R',3)]
        lst=[]
        for d2 in range(ds,8):
            st=3 if wchk==1 else stage(d2)
            if st not in chks and (d2==ds or (d2,0)<=prods[min(23,3*ds+t+3)]):
                tp=put([polls[st]],0); chks[st]=mkchk(st,tp+ckd)
        ck=chks[3 if wchk==1 else stage(ds)]; aft2=max(aft,ck[0].after+6)
        if cur and cur!=(ds,t): lst.append(A(f"v_add_u32 v{vP2}, 0x8000, v{vP2}"))
        cur=(ds,t)
        ld=A(f"buffer_load_dwordx4 a[{reg}:{reg+3}], v{vP2}, s[{sWs}:{sWs+3}], 0 offen offset:{c*1024} sc1",ordr=([qread[reg+3]] if reg<32 else [])+[ck[-1]])
        lst.append(ld); rload[w]=ld; ld.hard=aft
        put(lst,aft2,lsp/10); ld.before=max(first[w]-4,aft+1)
        if verbose: print(w,"reg",reg,"ld",ld.after,"need",first[w],"LATE" if first[w]-ld.after<lneed else "",file=sys.stderr)
    est=sorted((st_s[i+(1 if st_s[i].kind=="valu" else 0)].after+36*m,i) for (k,m),i in sidx.items())
    ins=[]
    for st in chks:
        t=chks[st][0].after
        ins.append((next((i for e,i in est if e+18>=t),len(st_s)),st))
    for i,_,st in sorted(((i,chks[st][0].after,st) for i,st in ins),reverse=True): st_s[i:i]=chks[st]
    for n_,x in enumerate(st_del): x.after=st_vm[-1].after+6+hole*n_
    st_eps.append(st_del)
    back=[]
    for n,(a,w,x) in enumerate(bb):
        kd,r=(Pacc if a[0]=="P" else Qacc)(a[1],a[2]); xr=xslot[x]
        if w[0]=="w": wr=wreg(*w[1:]); nd=wread[w]
        else: wr=rreg[w]; nd=[rload[w]]
        cin="0" if first[a]==n else f"{kd}[{r}:{r+3}]"
        nd=[xread[x]]+nd
        if first2.get(a)==n: nd=nd+[y for y in YT[a[1]] if f"v{r}" in y.wr or f"v{r+3}" in y.wr]
        back.append(A(f"v_mfma_f32_16x16x32_bf16 {kd}[{r}:{r+3}], a[{wr}:{wr+3}], a[{xr}:{xr+3}], {cin}",needs=nd))
    st_bar=[]
    for k in range(4): st_bar+=[barM[k]]+([barE[k]] if k<3 else [])
    if not s3m: st_bar.append(barS)
    st_diag=[]
    if prof:
        for i in range(20): st_diag.append(I(f"s_memtime s[{60+2*i}:{61+2*i}]","stamp",after=min(N-1,d0+dstep*i),before=min(N-1,d0+dstep*i)+1))
    elif diag:
        for pos in {5:(0,N-1),6:(0,d0,N-1),7:(0,),8:(0,320,640,960,1280,N-1)}[dset]: st_diag.append(stamp(emit=False,after=pos,before=pos+1))
    for x in st_wr[:8]: S.emit(x)
    st_wr=st_wr[8:]
    if dstart:
        stamp(); stamp(needs=xdma[(0,1)])
    S.emit(bar0)
    for x in st_xr[:6]: S.emit(x)
    st_xr=st_xr[6:]
    for l_ in [st_vm,st_s]+st_eps:
        for x in l_:
            if x.kind in VM: x.cost=4 if ', 0 offen' in x.text and x.kind!='vst' else 8
    S.vm_lat=16*wr_lead; S.lead=lead
    S.hooks[mark[('Q',3)]+1]=lambda S: (setattr(S,'pre',ppre),setattr(S,'post',ppost))
    S.hooks[tdone+20]=lambda S: setattr(S,'vm_done',vdone)
    S.run(back,[st_bar,st_xr,st_wr,st_vm,st_diag,st_tr,st_s]+st_eps,soft=[2,None,6,1,None,None,None]+[None]*len(st_eps))
    if amp:
        while stamps[0]<8: stamp()
        EM(f"""s_waitcnt lgkmcnt(0)
        s_sub_u32 s92, s{60+2*ampb}, s{60+2*ampa}
        s_mul_i32 s92, s92, {amp}
        s_min_u32 s92, s92, 20000""")
        S.emit(I("L_amp:\n    s_memrealtime s[94:95]\n    s_waitcnt lgkmcnt(0)\n    s_sub_u32 s93, s94, s74\n    s_cmp_lt_u32 s93, s92\n    s_cbranch_scc1 L_amp","salu"))
    elif diag or prof:
        while diag and stamps[0]<8: stamp()
        EM(f"""s_waitcnt lgkmcnt(0)
        s_mov_b32 s{sWs+2}, 0x2000000
        s_lshl_b32 s3, s2, 2
        s_add_u32 s3, s3, s30
        s_lshl_b32 s3, s3, 7
        s_add_u32 s3, s3, 0x1000000
        v_mov_b32 v2, s3
        s_mov_b64 exec, 1""")
        for k in range(32 if diag else 20):
            E(f"v_mov_b32 v3, s{60+(k if diag else 2*k)}"); E(f"buffer_store_dword v3, v2, s[{sWs}:{sWs+3}], 0 offen offset:{4*k}"); E("s_nop 1")
    if kill:
        f0=back[0].idx; ck_={x for l in chks.values() for x in l}; ss_=set(st_s)-ck_; se_={x for l in st_eps for x in l}; sr_=set(st_tr)
        def keep(x):
            if x.idx<f0: return True
            if kill&1 and x.kind=="bar": return False
            if kill&2 and x.kind=="dma" and f"s[{sW}:" in x.text: return False
            if kill&4 and x.kind=="dma" and f"s[{sX}:" in x.text: return False
            if kill&8 and "tr_b16" in x.text: return False
            if kill&16 and "ds_read_b128 a" in x.text: return False
            if kill&128 and x in ss_: return False
            if kill&256 and x in se_ and x.kind!="vst": return False
            if kill&512 and x in sr_ and f"v{vK}," not in x.text: return False
            if kill&32 and x.kind=="vld" and "dwordx4" in x.text: return False
            if kill&64 and x.kind=="vst" and f"s[{sO}:" in x.text: return False
            return True
        S.out=[x for x in S.out if keep(x)]
    print(f"; est cycles {S.t} waits {S.nwait} nops {S.nnop} over {S.over} n {len(S.out)} bytes {S.off} tail {S.t-back[-1].t}", file=sys.stderr)
    if verbose:
        print(S.overlog,file=sys.stderr)
        print('free slots per 64:',[sum(abs(x) for x in S.left[i:i+64])//4 for i in range(0,N,64)],file=sys.stderr)
    body=S.text().replace("s_getpc_b64 s[56:57]","s_getpc_b64 s[56:57]\nL_pc:").replace("CODE_LEFT","L_code_end-L_pc-4")
    body+="\n    s_endpgm"
    for st in chks:
        body+=f"""
L_spin{st}:
    s_mov_b32 s59, 0x40000
L_spin{st}a:
    buffer_load_dword v{vK2}, off, s[{sD}:{sD+3}], 0 offset:{4*st} sc1
    s_waitcnt vmcnt(0)
    v_cmp_gt_u32 vcc, 4, v{vK2}
    s_sub_u32 s59, s59, 1
    s_cmp_eq_u32 s59, 0
    s_cbranch_scc1 L_back{st}
    s_sleep 4
    s_cbranch_vccnz L_spin{st}a
    s_branch L_back{st}"""
    body+="\n"+helper(RAW0,WSN,diag and not amp)
    return wrap(body,"; dilated causal conv, two-phase fast-FIR form (8 products per output pair), gate fused\n",sgpr=102 if prof else 96)

if __name__=="__main__":
    kw={}
    for o in sys.argv[2:]:
        k,v=o.split("="); kw[k]=int(v)
    t=gen(**kw)
    open(sys.argv[1],"w").write(t)
```
